```python
import torch

def _softmax(x, axis=-1):
    return torch.softmax(x, dim=axis)

def _gelu(x):
    return torch.nn.functional.gelu(x, approximate='tanh')

def _silu(x):
    return torch.nn.functional.silu(x)

def _sigmoid(x):
    return torch.sigmoid(x)

def _layernorm(x, axis=-1, eps=1e-05):
    m = x.mean(dim=axis, keepdim=True)
    v = x.var(dim=axis, keepdim=True, unbiased=False)
    return (x - m) / torch.sqrt(v + eps)

def _scatter_add(tgt, idx, src, axis=0):
    return tgt.clone().index_add_(axis, idx, src)

def _segment_sum(src, seg, n):
    out = torch.zeros((n,) + src.shape[1:], dtype=src.dtype)
    return out.index_add_(0, seg, src)

def _pad(x, pw):
    flat = tuple((v for pair in reversed(pw) for v in pair))
    return torch.nn.functional.pad(x, flat)
kernel_name = 'adaLN_cond__gqa_block_cached__swiglu_ffn__decode'

def setup_inputs():

    _w = lambda a: (lambda t: t.to(torch.bfloat16) if t.is_floating_point() else t)(torch.as_tensor(a))

    def _A_setup():
        B, Sq, D = (1, 1, 512)
        Hq, Hkv, Sk, Dh = (32, 32, 8192, 128)
        assert Hq % Hkv == 0, (Hq, Hkv)
        return {'x': _w((lambda *s: torch.randn(*s, dtype=torch.bfloat16) * 0.05)(B, Sq, D)), 'k_cache': _w((lambda *s: torch.randn(*s, dtype=torch.bfloat16) * 3.2)(B, Hkv, Sk, Dh)), 'v_cache': _w((lambda *s: torch.randn(*s, dtype=torch.bfloat16) * 0.4)(B, Hkv, Sk, Dh)), 'wq': _w((lambda *s: torch.randn(*s, dtype=torch.bfloat16) * 3.2)(D, Hq * Dh) * D ** (-0.5)), 'wo': _w((lambda *s: torch.randn(*s, dtype=torch.bfloat16) * 0.4)(Hq * Dh, D) * (Hq * Dh) ** (-0.5))}
    _A_in = _A_setup()

    def _B_setup():
        B, S, D, F = (1, 1, 512, 1376)
        return {'x': _w((lambda *s: torch.randn(*s, dtype=torch.bfloat16) * 0.05)(B, S, D)), 'w_gate': _w((lambda *s: torch.randn(*s, dtype=torch.bfloat16) * 0.05)(D, F)), 'w_up': _w((lambda *s: torch.randn(*s, dtype=torch.bfloat16) * 0.05)(D, F)), 'w_down': _w((lambda *s: torch.randn(*s, dtype=torch.bfloat16) * 0.05)(F, D))}
    _B_in = _B_setup()
    return {'A_x': _A_in['x'], 'A_k_cache': _A_in['k_cache'], 'A_v_cache': _A_in['v_cache'], 'A_wq': _A_in['wq'], 'A_wo': _A_in['wo'], 'B_x': _B_in['x'], 'B_w_gate': _B_in['w_gate'], 'B_w_up': _B_in['w_up'], 'B_w_down': _B_in['w_down'], 'c': _w((lambda *s: torch.randn(*s, dtype=torch.bfloat16) * 0.1)(1, 512) * 8.0), 'w_mod': _w((lambda *s: torch.randn(*s, dtype=torch.bfloat16) * 0.1)(512, 6 * 512) * 512 ** (-0.5) * 8.0)}

def reference(A_x, A_k_cache, A_v_cache, A_wq, A_wo, B_x, B_w_gate, B_w_up, B_w_down, c, w_mod):

    def _A_ref(x, k_cache, v_cache, wq, wo):
        B, Sq, D = x.shape
        Hq, Dh = (32, 128)
        Hkv = k_cache.shape[1]
        rep = Hq // Hkv
        q = (lambda x, *d: x.permute(*d))((x @ wq).reshape(B, Sq, Hq, Dh), 0, 2, 1, 3)
        k = (lambda x, n, axis: torch.repeat_interleave(x, n, dim=axis))(k_cache, rep, axis=1)
        v = (lambda x, n, axis: torch.repeat_interleave(x, n, dim=axis))(v_cache, rep, axis=1)
        scores = torch.einsum('bhqd,bhkd->bhqk', q, k) * Dh ** (-0.5)
        p = _softmax(scores, axis=-1)
        o = torch.einsum('bhqk,bhkd->bhqd', p, v)
        return (lambda x, *d: x.permute(*d))(o, 0, 2, 1, 3).reshape(B, Sq, Hq * Dh) @ wo

    def _B_ref(x, w_gate, w_up, w_down):
        g = _silu(x @ w_gate)
        u = x @ w_up
        return g * u @ w_down
    x = A_x
    mod = (_silu(c) @ w_mod).reshape(c.shape[0], 6, 1, -1)
    sa, ca, ga, sb, cb, gb = (mod[:, 0].clone(), mod[:, 1].clone(), mod[:, 2].clone(), mod[:, 3].clone(), mod[:, 4].clone(), mod[:, 5].clone())
    h = _layernorm(x, axis=-1) * (1 + ca) + sa
    x = x + ga * _A_ref(h, A_k_cache, A_v_cache, A_wq, A_wo)
    h = _layernorm(x, axis=-1) * (1 + cb) + sb
    x = x + gb * _B_ref(h, B_w_gate, B_w_up, B_w_down)
    return x
```

```python
import re

TRANS = ("v_exp_f32", "v_log_f32", "v_rcp_f32", "v_rsq_f32", "v_sqrt_f32", "v_sin_f32", "v_cos_f32")


def _regs(tok):
    tok = tok.strip()
    neg = tok.startswith("-")
    if neg:
        tok = tok[1:]
    if tok.startswith("|") and tok.endswith("|"):
        tok = tok[1:-1]
    m = re.fullmatch(r"([vs])(\d+)", tok)
    if m:
        return m.group(1), {int(m.group(2))}
    m = re.fullmatch(r"([vs])\[(\d+):(\d+)\]", tok)
    if m:
        return m.group(1), set(range(int(m.group(2)), int(m.group(3)) + 1))
    if tok == "vcc":
        return "s", {"vcc_lo", "vcc_hi"}
    if tok in ("vcc_lo", "vcc_hi"):
        return "s", {tok}
    if tok == "exec":
        return "s", {"exec_lo", "exec_hi"}
    if tok in ("exec_lo", "exec_hi"):
        return "s", {tok}
    if tok == "m0":
        return "s", {"m0"}
    return None, set()


class Ins:
    __slots__ = ("text", "op", "kind", "vdef", "vuse", "sdef", "suse", "dpp", "trans", "dot", "mfma", "srcc",
                 "wide_store", "store_data", "nop", "readlane", "permlane", "lanesel", "target", "label")

    def __init__(self, text):
        self.text = text
        self.label = None
        self.target = None
        t = text.split(";")[0].strip()
        self.vdef = set(); self.vuse = set(); self.sdef = set(); self.suse = set()
        self.dpp = False; self.trans = False; self.dot = False; self.mfma = False; self.srcc = set()
        self.wide_store = False; self.store_data = set(); self.nop = 1
        self.readlane = False; self.permlane = False; self.lanesel = set()
        if not t:
            self.op = ""; self.kind = "none"; self.nop = 0
            return
        if t.endswith(":"):
            self.op = ""; self.kind = "label"; self.label = t[:-1]; self.nop = 0
            return
        if t.startswith("."):
            self.op = ""; self.kind = "none"; self.nop = 0
            return
        parts = t.split(None, 1)
        op = parts[0]
        self.op = op
        rest = parts[1] if len(parts) > 1 else ""
        ops = []
        cur = ""
        depth = 0
        for ch in rest:
            if ch == "[":
                depth += 1
            if ch == "]":
                depth -= 1
            if ch == "," and depth == 0:
                ops.append(cur.strip()); cur = ""
            else:
                cur += ch
        if cur.strip():
            ops.append(cur.strip())
        mods = ""
        if ops:
            last = ops[-1]
            sp = last.split(None, 1)
            if len(sp) > 1:
                ops[-1] = sp[0]; mods = sp[1]
        self_ops = [(_regs(o)) for o in ops]

        def use(i):
            k, r = self_ops[i]
            if k == "v": self.vuse |= r
            elif k == "s": self.suse |= r

        def dfn(i):
            k, r = self_ops[i]
            if k == "v": self.vdef |= r
            elif k == "s": self.sdef |= r

        n = len(ops)
        if op == "s_nop":
            self.kind = "salu"; self.nop = int(ops[0], 0) + 1
            return
        if op.startswith("s_cbranch") or op == "s_branch":
            self.kind = "branch"; self.target = ops[0]
            if "vcc" in op: self.suse |= {"vcc_lo", "vcc_hi"}
            if "exec" in op: self.suse |= {"exec_lo", "exec_hi"}
            return
        if op in ("s_waitcnt", "s_barrier", "s_endpgm", "s_sleep", "s_setprio", "s_sethalt"):
            self.kind = "salu"
            return
        if op.startswith("s_load") or op.startswith("s_buffer_load") or op in ("s_memrealtime", "s_memtime"):
            self.kind = "smem"; dfn(0)
            for i in range(1, n): use(i)
            return
        if op.startswith("s_cmp") or op.startswith("s_bitcmp"):
            self.kind = "salu"
            for i in range(n): use(i)
            return
        if op.startswith("s_"):
            self.kind = "salu"; dfn(0)
            for i in range(1, n): use(i)
            if "saveexec" in op:
                self.sdef |= {"exec_lo", "exec_hi"}; self.suse |= {"exec_lo", "exec_hi"}
            if op in ("s_addk_i32", "s_mulk_i32", "s_cmov_b32", "s_cmov_b64", "s_bitset0_b32", "s_bitset1_b32"):
                use(0)
            return
        if op.startswith("buffer_") or op.startswith("global_"):
            self.kind = "vmem"
            is_store = "store" in op
            is_atomic = "atomic" in op
            if op.startswith("buffer_"):
                if " lds" in (" " + mods) and "load" in op:
                    for i in range(n): use(i)
                elif is_store or is_atomic:
                    for i in range(n): use(i)
                    k, r = self_ops[0]
                    self.store_data = set(r)
                    self.wide_store = len(r) >= 3
                else:
                    dfn(0)
                    for i in range(1, n): use(i)
            else:
                if is_store or is_atomic:
                    for i in range(n): use(i)
                    k, r = self_ops[1]
                    self.store_data = set(r)
                    self.wide_store = len(r) >= 3
                else:
                    dfn(0)
                    for i in range(1, n): use(i)
            return
        if op.startswith("ds_"):
            self.kind = "ds"
            if op.startswith("ds_read") or op.startswith("ds_bpermute") or op.startswith("ds_permute") or op.startswith("ds_swizzle") or "_rtn" in op:
                dfn(0)
                for i in range(1, n): use(i)
            else:
                for i in range(n): use(i)
            return
        if op.startswith("v_"):
            self.kind = "valu"
            if op.startswith("v_mfma"):
                self.mfma = True
                dfn(0)
                use(1); use(2); use(3)
                k, r = self_ops[3]
                if k == "v": self.srcc = set(r)
                return
            base = op.replace("_e32", "").replace("_e64", "").replace("_dpp", "")
            self.dpp = op.endswith("_dpp") or "quad_perm" in mods or "row_" in mods
            self.trans = base in TRANS
            self.dot = base.startswith("v_dot")
            if base.startswith("v_permlane"):
                self.permlane = True
                dfn(0); dfn(1); use(0); use(1)
                return
            if base in ("v_readlane_b32", "v_readfirstlane_b32"):
                self.readlane = True
                dfn(0); use(1)
                if n > 2:
                    use(2)
                    k, r = self_ops[2]
                    if k == "s": self.lanesel = set(r)
                return
            if base == "v_writelane_b32":
                self.readlane = True
                dfn(0); use(0); use(1)
                if n > 2:
                    use(2)
                    k, r = self_ops[2]
                    if k == "s": self.lanesel = set(r)
                return
            if base.startswith("v_cmp"):
                dfn(0)
                for i in range(1, n): use(i)
                if base.startswith("v_cmpx"):
                    self.sdef |= {"exec_lo", "exec_hi"}
                return
            dfn(0)
            for i in range(1, n): use(i)
            if base in ("v_fmac_f32", "v_mac_f32", "v_dot2c_f32_bf16", "v_pk_fmac_f16") or self.dpp:
                use(0)
            if base == "v_cndmask_b32" and n == 3:
                self.suse |= {"vcc_lo", "vcc_hi"}
            if base in ("v_add_co_u32", "v_sub_co_u32", "v_addc_co_u32", "v_subb_co_u32", "v_subrev_co_u32"):
                dfn(1)
            return
        raise ValueError("unknown instruction: " + text)


def required_gap(p, c):
    need = 0
    pv = p.kind == "valu"
    cv = c.kind == "valu"
    if pv and not p.mfma:
        if p.vdef & c.vuse or (c.permlane and p.vdef & c.vdef):
            if cv and c.dpp: need = max(need, 2)
            if cv and c.permlane: need = max(need, 2)
            if cv and c.readlane: need = max(need, 1)
            if cv and c.mfma: need = max(need, 2)
            if p.trans and cv and not c.trans: need = max(need, 1)
            if p.trans and cv and c.trans: need = max(need, 1)
        if p.dot:
            if (p.vdef & c.vuse) or (p.vdef & c.vdef):
                if cv and c.dot and c.op == p.op and not c.dpp:
                    ops = c.text.split(";")[0]
                    toks = [x.strip() for x in ops.split(None, 1)[1].split(",")]
                    ab = set()
                    for tk in toks[1:3]:
                        k, r = _regs(tk.split()[0])
                        if k == "v": ab |= r
                    if p.vdef & ab: need = max(need, 3)
                else:
                    need = max(need, 3)
        if p.sdef:
            if c.kind == "vmem" and (p.sdef & c.suse): need = max(need, 5)
            if cv and (p.sdef & c.suse): need = max(need, 2)
            if cv and (p.sdef & c.lanesel): need = max(need, 4)
            if "exec_lo" in p.sdef or "exec_hi" in p.sdef:
                if cv and c.dpp: need = max(need, 5)
                if cv and c.mfma: need = max(need, 4)
                if cv and (c.readlane or c.permlane): need = max(need, 4)
    if pv and p.mfma:
        passes = 4
        if "32x32x16" in p.op or "32x32x8" in p.op: passes = 8
        d = p.vdef
        if c.kind == "valu" and c.mfma:
            ab = c.vuse - c.srcc
            if d & ab: need = max(need, {4: 8, 8: 12}[passes])
            if d & c.srcc:
                if c.srcc == d:
                    pass
                else:
                    need = max(need, {4: 6, 8: 10}[passes])
            elif d & c.vdef:
                need = max(need, {4: 8, 8: 12}[passes])
        else:
            if (d & c.vuse) or (d & c.vdef) or (d & c.store_data):
                need = max(need, {4: 8, 8: 12}[passes])
        if cv and not c.mfma and (p.srcc & c.vdef):
            need = max(need, {4: 3, 8: 7}[passes])
    if p.kind == "vmem" and p.wide_store:
        if p.store_data & c.vdef:
            need = max(need, 2 if cv else 1)
    if p.kind == "salu" and "m0" in p.sdef and (c.kind in ("vmem", "ds")) and ("m0" in c.suse or " lds" in c.text):
        need = max(need, 1)
    return need


MAXWIN = 14


def fix_hazards(lines, verbose=False):
    ins = [Ins(l) for l in lines]
    changed = True
    total_nops = 0
    while changed:
        changed = False
        labels = {x.label: i for i, x in enumerate(ins) if x.kind == "label"}

        def scan_forward(hist, start):
            cur = [(p, d) for p, d in hist]
            i = start
            steps = 0
            while i < len(ins) and cur and steps < 40:
                c = ins[i]
                if c.nop == 0 and c.kind in ("none", "label"):
                    i += 1; continue
                for p, d in cur:
                    need = required_gap(p, c)
                    if need > d:
                        return i, need - d
                cur = [(p, d + c.nop) for p, d in cur if d + c.nop < MAXWIN]
                if c.op in ("s_branch", "s_endpgm"):
                    if c.op == "s_branch":
                        i = labels[c.target]; steps += 1
                        continue
                    return None
                i += 1; steps += 1
            return None

        i = 0
        while i < len(ins):
            c = ins[i]
            if c.nop == 0 and c.kind in ("none", "label"):
                i += 1
                continue
            d = 0
            j = i - 1
            worst = 0
            while j >= 0 and d < MAXWIN:
                p = ins[j]
                if p.kind in ("none", "label"):
                    j -= 1; continue
                if p.op in ("s_branch", "s_endpgm"):
                    break
                need = required_gap(p, c)
                if need > d:
                    worst = max(worst, need - d)
                d += p.nop
                j -= 1
            if worst > 0:
                ins.insert(i, Ins(f"  s_nop {worst - 1}"))
                total_nops += worst
                i += 1
            i += 1
        labels = {x.label: k for k, x in enumerate(ins) if x.kind == "label"}
        for i, b in enumerate(ins):
            if b.kind != "branch":
                continue
            hist = []
            d = 1
            j = i - 1
            while j >= 0 and d < MAXWIN:
                p = ins[j]
                if p.kind in ("none", "label"):
                    j -= 1; continue
                if p.op in ("s_branch", "s_endpgm"):
                    break
                hist.append((p, d))
                d += p.nop
                j -= 1
            r = scan_forward(hist, labels[b.target])
            if r is not None:
                idx, miss = r
                ins.insert(i, Ins(f"  s_nop {miss - 1}"))
                total_nops += miss
                changed = True
                break
    if verbose:
        print("hazard pass inserted wait states:", total_nops)
    return [x.text for x in ins]


class G:
    def __init__(self):
        self.lines = []
        self.vmq = []

    def e(self, s):
        self.lines.append("  " + s if not s.endswith(":") else s)

    def c(self, s):
        self.lines.append("  ; " + s)

    def label(self, s):
        self.lines.append(s + ":")

    def vm(self, s, tag=None):
        self.e(s)
        self.vmq.append(tag)

    def waitvm(self, *tags):
        idx = -1
        for i, t in enumerate(self.vmq):
            if t in tags:
                idx = i
        if idx < 0:
            return
        n = len(self.vmq) - 1 - idx
        assert n <= 63, n
        self.e(f"s_waitcnt vmcnt({n})")
        self.vmq = self.vmq[idx + 1:]

    def waitvm_all(self):
        self.e("s_waitcnt vmcnt(0)")
        self.vmq = []

    def waitlgkm(self, n=0):
        self.e(f"s_waitcnt lgkmcnt({n})")
```

```python
import sys, os
sys.path.insert(0, os.path.dirname(os.path.abspath(__file__)))
from asmlib import G, fix_hazards

NAME = "adaLN_cond__gqa_block_cached__swiglu_ffn__decode"
HDR = open("cdna_kernels/%s.s.ref" % NAME).read().split("; Override launch")[0]

WS_MOD = 0x1000
WS_X2 = 0x4000
WS_ML = 0x8000
WS_YC = 0x10000
WS_YA = 0x40000
WS_DBG = 0x100000
WS_STAMP = 0x8000000
L_MOD = 0
L_STAT = 64
L_TICK = 80
L_QP = 2048
L_H = 4096
L_OP = 6656
L_GUP = 10752
LDS_BYTES = 12800

LOG2E = 0x3fb8aa3b
NLOG2E = 0xbfb8aa3b
SCALE = 0x3db504f3
INV512 = 0x3b000000
EPS = 0x3727c5ac
HI = "0xffff0000"
VALID_LO, VALID_HI = "0x00ff00ff", "0xff00ff00"

SRD_K, SRD_V, SRD_WQ, SRD_WO, SRD_WM, SRD_WS, SRD_WG, SRD_WU, SRD_WD, SRD_X, SRD_C, SRD_OUT = \
    [f"s[{a}:{a+3}]" for a in range(4, 52, 4)]
S_W, S_TAG, S_EP, S_X, S_I = "s97", "s98", "s99", "s100", "s101"
SOFF = {0: "0"}
for k in range(1, 8):
    SOFF[4096 * k] = f"s{77 + k}"
for j in range(4, 16):
    SOFF[8192 * j] = f"s{85 + j - 4}"
STR = [62, 60, 64, 66, 68, 70, 72, 74, 76, 78, 80, 82, 84, 86, 88]

DEF = dict(
    kv_flags="nt", w_flags="nt", ld_flags="sc1", st_flags="sc0 sc1",
    n_early=6,
    n_vpre=6,
    lagt=16,
    ml_at=13,
    p_ln=8, p1=24, p2=36, wq_first=True, prio=True, cpf=False, wo_per=3, wo_start=10, qk_v=4, q_v=4, qprio=2, vprio_at=11, ffn_st=0, o_st=0, ffn_early=False, fork_at=9, ticket=True, ixor=0, pf_pos=-1, pf_flags="", pf_reg=240,
    stamps=False, dbg=False, timeout=200000, sleep=1,
)


def gen(**kw):
    P = dict(DEF); P.update(kw)
    g = G()
    e = g.e
    stamp_n = [0]

    def stamp(idx=None):
        if P["stamps"]:
            k = stamp_n[0] if idx is None else idx
            assert k < len(STR)
            e(f"s_memrealtime s[{STR[k]}:{STR[k]+1}]")
            stamp_n[0] = max(stamp_n[0], k + 1)

    def set_exec(lo, hi):
        e(f"s_mov_b32 exec_lo, {lo}")
        e(f"s_mov_b32 exec_hi, {hi}")

    def exec_all():
        e("s_mov_b64 exec, -1")

    def dpp_all(op, regs, steps):
        for st in steps:
            for r in regs:
                e(f"{op}_dpp v{r}, v{r}, v{r} {st}")

    FULL = "row_mask:0xf bank_mask:0xf"
    ROW16 = [f"row_ror:8 {FULL}", f"row_ror:4 {FULL}", f"row_ror:2 {FULL}", f"row_ror:1 {FULL}"]
    XROW = ["row_bcast:15 row_mask:0xa bank_mask:0xf", "row_bcast:31 row_mask:0xc bank_mask:0xf"]

    def rnd2(a, b, t):
        e(f"v_cvt_pk_bf16_f32 v{t}, v{a}, v{b}")
        e(f"v_lshlrev_b32 v{a}, 16, v{t}")
        e(f"v_and_b32 v{b}, {HI}, v{t}")

    def rnd1(a, t=None):
        e(f"v_cvt_pk_bf16_f32 v{a}, v{a}, v{a}")
        e(f"v_and_b32 v{a}, {HI}, v{a}")

    def unpack(src, lo, hi):
        e(f"v_lshlrev_b32 v{lo}, 16, v{src}")
        e(f"v_and_b32 v{hi}, {HI}, v{src}")

    def tagcheck(tagregs, t0, t1, fail_label_cond):
        rs = list(tagregs)
        if len(rs) == 2:
            e(f"v_xor_b32 v{t0}, {S_TAG}, v{rs[0]}")
            e(f"v_xor_b32 v{t1}, {S_TAG}, v{rs[1]}")
            e(f"v_or_b32 v{t0}, v{t0}, v{t1}")
        else:
            e(f"v_min3_u32 v{t0}, v{rs[0]}, v{rs[1]}, v{rs[2]}")
            e(f"v_max3_u32 v{t1}, v{rs[0]}, v{rs[1]}, v{rs[2]}")
            k = 3
            while k < len(rs):
                if k + 1 < len(rs):
                    e(f"v_min3_u32 v{t0}, v{t0}, v{rs[k]}, v{rs[k+1]}")
                    e(f"v_max3_u32 v{t1}, v{t1}, v{rs[k]}, v{rs[k+1]}")
                    k += 2
                else:
                    e(f"v_min_u32 v{t0}, v{t0}, v{rs[k]}")
                    e(f"v_max_u32 v{t1}, v{t1}, v{rs[k]}")
                    k += 1
            e(f"v_xor_b32 v{t0}, {S_TAG}, v{t0}")
            e(f"v_xor_b32 v{t1}, {S_TAG}, v{t1}")
            e(f"v_or_b32 v{t0}, v{t0}, v{t1}")
        e(f"v_cmp_ne_u32 vcc, 0, v{t0}")
        e("s_cmp_lg_u64 vcc, 0")

    poll_id = [0]

    def poll(issue, tagregs, t0, t1, first_issued=False, between=None, tag="poll"):
        n = poll_id[0]; poll_id[0] += 1
        if not first_issued:
            issue(True)
        if between:
            between()
        g.waitvm(tag)
        tagcheck(tagregs, t0, t1, None)
        e(f"s_cbranch_scc0 L_pok{n}")
        e(f"s_mov_b32 s58, {P['timeout']}")
        g.label(f"L_pl{n}")
        if P["sleep"]:
            e(f"s_sleep {P['sleep']}")
        issue(False)
        e("s_waitcnt vmcnt(0)")
        tagcheck(tagregs, t0, t1, None)
        e(f"s_cbranch_scc0 L_pok{n}")
        e("s_sub_u32 s58, s58, 1")
        e("s_cmp_lg_u32 s58, 0")
        e(f"s_cbranch_scc1 L_pl{n}")
        g.label(f"L_pok{n}")

    LD = P["ld_flags"]; STF = P["st_flags"]; KVF = P["kv_flags"]; WF = P["w_flags"]

    e("s_cmp_ge_u32 s2, 256")
    e("s_cbranch_scc1 L_end")
    e("s_load_dwordx16 s[52:67], s[0:1], 0")
    e("s_load_dwordx8 s[68:75], s[0:1], 64")
    e("s_load_dwordx2 s[76:77], s[0:1], 104")
    if P["cpf"]:
        e("s_getpc_b64 s[78:79]")
        g.label("L_pc")
    e("v_lshlrev_b32 v1, 2, v0")
    e("v_mov_b32 v2, 0")
    e("ds_write_b32 v1, v2")
    e("v_lshrrev_b32 v1, 6, v0")
    e("v_and_b32 v0, 63, v0")
    e(f"v_readfirstlane_b32 {S_W}, v1")
    e(f"s_and_b32 {S_X}, s2, 7")
    e(f"s_lshr_b32 {S_I}, s2, 3")
    if P["ixor"]: e(f"s_xor_b32 {S_I}, {S_I}, {P['ixor']}")
    if P["cpf"]:
        e(f"s_sub_u32 s3, {S_I}, 24")
        e("s_cbranch_scc1 L_nocpf")
        e("s_lshl_b32 s3, s3, 3")
        e(f"s_add_u32 s3, s3, {S_W}")
        e("s_lshl_b32 s3, s3, 10")
        e("s_cmp_ge_u32 s3, L_end-L_pc")
        e("s_cbranch_scc1 L_nocpf")
        e("v_lshlrev_b32 v1, 4, v0")
        e("v_add_u32 v1, s3, v1")
        e("v_min_u32 v1, L_end-L_pc-16, v1")
        e("global_load_dwordx4 v[252:255], v1, s[78:79]")
        g.label("L_nocpf")
    for off, r in SOFF.items():
        if off:
            e(f"s_mov_b32 {r}, {off}")
    e("v_and_b32 v1, 1, v0")
    e("v_lshlrev_b32 v1, 4, v1")
    e("v_mov_b32 v2, 0xffff")
    e("v_lshlrev_b32 v1, v1, v2")
    e("v_bfe_u32 v2, v0, 1, 2")
    for r in range(4):
        e(f"v_cmp_eq_u32 vcc, {r}, v2")
        e(f"v_cndmask_b32 v{4+r}, 0, v1, vcc")
    e("v_lshrrev_b32 v3, 3, v0")
    e("v_and_b32 v2, 7, v0")
    e("v_lshlrev_b32 v2, 4, v2")
    e("v_lshl_add_u32 v1, v3, 8, v2")
    e(f"s_lshl_b32 s3, {S_X}, 5")
    e(f"s_add_u32 s3, s3, {S_I}")
    e("s_lshl_b32 s3, s3, 18")
    e(f"s_lshl_b32 vcc_lo, {S_W}, 15")
    e("s_add_u32 s3, s3, vcc_lo")
    e("v_add_u32 v1, s3, v1")
    e("v_lshl_add_u32 v2, v3, 17, v2")
    e(f"s_lshr_b32 s3, {S_W}, 1")
    e("s_lshl_b32 s3, s3, 20")
    e(f"s_lshl_b32 vcc_lo, {S_X}, 2")
    e(f"s_lshr_b32 vcc_hi, {S_I}, 3")
    e("s_add_u32 vcc_lo, vcc_lo, vcc_hi")
    e("s_lshl_b32 vcc_lo, vcc_lo, 8")
    e("s_add_u32 s3, s3, vcc_lo")
    e(f"s_and_b32 vcc_lo, {S_W}, 1")
    e("s_lshl_b32 vcc_lo, vcc_lo, 7")
    e("s_add_u32 s3, s3, vcc_lo")
    e("v_add_u32 v2, s3, v2")
    e("v_lshrrev_b32 v3, 1, v0")
    e("v_mul_u32_u24 v18, 12288, v3")
    e("v_and_b32 v19, 1, v0")
    e("v_lshl_add_u32 v18, v19, 4, v18")
    e(f"s_mul_i32 s3, {S_W}, {64*6144}")
    e("s_lshr_b32 vcc_lo, s2, 5")
    e("s_lshl_b32 vcc_lo, vcc_lo, 10")
    e("s_add_u32 s3, s3, vcc_lo")
    e(f"s_lshl_b32 vcc_lo, {S_X}, 7")
    e("s_add_u32 s3, s3, vcc_lo")
    e("s_bfe_u32 vcc_lo, s2, 0x20003")
    e("s_lshl_b32 vcc_lo, vcc_lo, 5")
    e("s_add_u32 s3, s3, vcc_lo")
    e("v_add_u32 v18, s3, v18")
    e("v_lshlrev_b32 v19, 2, v3")
    e(f"s_lshl_b32 s3, {S_W}, 7")
    e("v_add_u32 v19, s3, v19")
    e("v_lshlrev_b32 v3, 4, v0")
    e("s_waitcnt lgkmcnt(0)")
    e("s_barrier")
    stamp()

    def srd(base, plo, size):
        e(f"s_mov_b32 s{base}, s{plo}")
        e(f"s_and_b32 s{base+1}, s{plo+1}, 0xffff")
        e(f"s_mov_b32 s{base+2}, {size}")
        e(f"s_mov_b32 s{base+3}, 0x20000")

    srd(44, 70, 1024)
    srd(20, 72, 3145728)
    e("s_cmp_lt_u32 s2, 192")
    e("s_cselect_b32 s22, s22, 0")
    g.vm(f"buffer_load_dword v16, v19, {SRD_C}, 0 offen {WF}", "c")
    e(f"s_mov_b32 s3, 6144")
    g.vm(f"buffer_load_dwordx4 v[20:23], v18, {SRD_WM}, 0 offen {WF}", "wm")
    g.vm(f"buffer_load_dwordx4 v[24:27], v18, {SRD_WM}, s3 offen {WF}", "wm")
    srd(4, 54, 67108864)
    srd(12, 58, 4194304)
    srd(24, 76, 268435456)
    e("s_load_dword s99, s[76:77], 0")
    srd(40, 52, 1024)

    KB, WB, VP = 128, 64, 40

    def kreg(j, h): return KB + 8 * j + 4 * h

    def kvload(srdname, j, h, reg, tag):
        off = j * 2048 + h * 128
        so = SOFF[(off // 4096) * 4096]
        g.vm(f"buffer_load_dwordx4 v[{reg}:{reg+3}], v1, {srdname}, {so} offen offset:{off % 4096} {KVF}", tag)

    def wqload(j):
        r = WB + 4 * j
        g.vm(f"buffer_load_dwordx4 v[{r}:{r+3}], v2, {SRD_WQ}, {SOFF[8192*j]} offen {WF}", f"wq{j}")

    seq = []
    ks = [("k", j, h) for j in range(16) for h in range(2)]
    qs = [("q", j) for j in range(16)]
    if P["wq_first"]:
        for n in range(16):
            seq += [ks[n], qs[n]]
        seq += ks[16:]
    else:
        for j in range(16):
            seq += [ks[2*j], ks[2*j+1], qs[j]]

    def issue(item):
        if item[0] == "k":
            kvload(SRD_K, item[1], item[2], kreg(item[1], item[2]), f"k{item[1]}")
        else:
            wqload(item[1])

    ne = P["n_early"]
    for it in seq[:2]:
        issue(it)
    g.vm(f"buffer_load_dwordx4 v[40:43], v3, {SRD_X}, 0 offen {WF}", "x")
    for it in seq[2:ne]:
        issue(it)
    srd(8, 56, 67108864)
    srd(16, 60, 4194304)
    srd(28, 64, 1409024)
    srd(32, 66, 1409024)
    srd(36, 68, 1409024)
    srd(48, 74, 1024)
    e(f"s_mov_b32 s52, 0x05040100")
    e(f"s_mov_b32 s53, 0x07060302")

    g.waitvm("c")
    unpack(16, 28, 29)
    for r in (28, 29):
        e(f"v_mul_f32 v{r+2}, {NLOG2E:#x}, v{r}")
    for r in (28, 29):
        e(f"v_exp_f32 v{r+2}, v{r+2}")
    for r in (28, 29):
        e(f"v_add_f32 v{r+2}, 1.0, v{r+2}")
    for r in (28, 29):
        e(f"v_rcp_f32 v{r+2}, v{r+2}")
    for r in (28, 29):
        e(f"v_mul_f32 v{r}, v{r}, v{r+2}")
    e("v_cvt_pk_bf16_f32 v17, v28, v29")
    g.waitvm("wm")
    for r in range(4):
        e(f"v_perm_b32 v{28+2*r}, v{24+r}, v{20+r}, s52")
        e(f"v_perm_b32 v{29+2*r}, v{24+r}, v{20+r}, s53")
    for k in range(8):
        e(f"v_dot2_f32_bf16 v{8+k}, v{28+k}, v17, 0")
    dpp_all("v_add_f32", range(8, 16), [f"quad_perm:[2,3,0,1] {FULL}", f"row_ror:4 {FULL}", f"row_ror:8 {FULL}"])
    e("v_and_b32 v19, 1, v0")
    e("v_lshlrev_b32 v19, 5, v19")
    set_exec("0x00030003", "0x00030003")
    for k in range(8):
        e(f"ds_add_f32 v19, v{8+k} offset:{L_MOD + 4*k}")
    exec_all()
    e("s_waitcnt lgkmcnt(0)")
    e(f"s_add_u32 {S_EP}, {S_EP}, 1")
    e(f"s_mul_i32 {S_TAG}, {S_EP}, 0x9E3779B1")
    e("s_barrier")
    stamp()

    e(f"s_cmp_lg_u32 {S_W}, 0")
    e("s_cbranch_scc1 L_nopub")
    e("s_cmp_ge_u32 s2, 192")
    e("s_cbranch_scc1 L_nopub")
    if P["prio"]: e("s_setprio 3")
    e("v_lshlrev_b32 v28, 4, v0")
    set_exec("0xf", "0")
    e(f"ds_read_b128 v[16:19], v28 offset:{L_MOD}")
    e("s_lshr_b32 s3, s2, 5")
    e("s_lshl_b32 s3, s3, 11")
    e(f"s_lshl_b32 s54, {S_X}, 8")
    e("s_add_u32 s3, s3, s54")
    e("s_bfe_u32 s54, s2, 0x20003")
    e("s_lshl_b32 s54, s54, 6")
    e("s_add_u32 s3, s3, s54")
    e(f"s_add_u32 s3, s3, {WS_MOD}")
    e(f"v_mov_b32 v21, {S_TAG}")
    e(f"v_mov_b32 v23, {S_TAG}")
    e("s_waitcnt lgkmcnt(0)")
    e("v_cvt_pk_bf16_f32 v20, v16, v17")
    e("v_cvt_pk_bf16_f32 v22, v18, v19")
    e(f"buffer_store_dwordx4 v[20:23], v28, {SRD_WS}, s3 offen {STF}")
    exec_all()
    if P["prio"]: e("s_setprio 0")
    g.label("L_nopub")
    if P["ticket"]: e("s_load_dwordx2 s[52:53], s[0:1], 96")

    def issue_sc(track):
        f = g.vm if track else (lambda s, t=None: e(s))
        f(f"buffer_load_dwordx4 v[16:19], v3, {SRD_WS}, 0 offen offset:2048 {LD}", "poll")
        f(f"buffer_load_dwordx4 v[20:23], v3, {SRD_WS}, 0 offen offset:2064 {LD}", "poll")
        f(f"buffer_load_dwordx4 v[24:27], v3, {SRD_WS}, 0 offen offset:0 {LD}", "poll")
        f(f"buffer_load_dwordx4 v[28:31], v3, {SRD_WS}, 0 offen offset:16 {LD}", "poll")

    def ln_stats_finish(tm, tv, t):
        e(f"v_mul_f32 v{tm}, {INV512:#x}, v{tm}")
        e(f"v_mul_f32 v{tv}, {INV512:#x}, v{tv}")
        e(f"v_fma_f32 v{tv}, -v{tm}, v{tm}, v{tv}")
        rnd2(tm, tv, t)
        e(f"v_add_f32 v{tv}, {EPS:#x}, v{tv}")
        rnd1(tv)
        e(f"v_sqrt_f32 v{tv}, v{tv}")
        rnd1(tv)
        e(f"v_rcp_f32 v{tv}, v{tv}")

    def ln_apply(xf, tm, tv, t):
        for k in range(8):
            e(f"v_sub_f32 v{xf+k}, v{xf+k}, v{tm}")
        for k in range(0, 8, 2):
            rnd2(xf + k, xf + k + 1, t + k // 2)
        for k in range(8):
            e(f"v_mul_f32 v{xf+k}, v{xf+k}, v{tv}")
        for k in range(0, 8, 2):
            rnd2(xf + k, xf + k + 1, t + k // 2)

    def ln1_pre():
        g.waitvm("x")
        for r in range(4):
            unpack(40 + r, 8 + 2 * r, 9 + 2 * r)
        e("v_add_f32 v32, v8, v9")
        e("v_mul_f32 v33, v8, v8")
        for k in range(1, 8):
            if k >= 2:
                e(f"v_add_f32 v32, v32, v{8+k}")
            e(f"v_fmac_f32 v33, v{8+k}, v{8+k}")
        dpp_all("v_add_f32", (32, 33), ROW16 + XROW)
        e("v_readlane_b32 s54, v32, 63")
        e("v_readlane_b32 s55, v33, 63")
        e("v_mov_b32 v32, s54")
        e("v_mov_b32 v33, s55")
        ln_stats_finish(32, 33, 34)
        ln_apply(8, 32, 33, 34)
        e("v_lshlrev_b32 v3, 5, v0")
        e(f"v_add_u32 v3, {WS_MOD}, v3")

    def h_compute():
        for r in range(4):
            unpack(16 + 2 * r, 44 + 2 * r, 45 + 2 * r)
        for k in range(8):
            e(f"v_add_f32 v{44+k}, 1.0, v{44+k}")
        for k in range(0, 8, 2):
            rnd2(44 + k, 45 + k, 34 + k // 2)
        for k in range(8):
            e(f"v_mul_f32 v{8+k}, v{8+k}, v{44+k}")
        for k in range(0, 8, 2):
            rnd2(8 + k, 9 + k, 34 + k // 2)
        for r in range(4):
            unpack(24 + 2 * r, 44 + 2 * r, 45 + 2 * r)
        for k in range(8):
            e(f"v_add_f32 v{8+k}, v{8+k}, v{44+k}")
        for k in range(8):
            e(f"v_cvt_pk_bf16_f32 v{52+k}, v{8+k}, v{8+k}")
        e("v_lshrrev_b32 v32, 1, v0")
        e("v_mul_u32_u24 v32, 80, v32")
        e("v_and_b32 v33, 1, v0")
        e("v_lshl_add_u32 v32, v33, 5, v32")
        e(f"ds_write_b128 v32, v[52:55] offset:{L_H}")
        e(f"ds_write_b128 v32, v[56:59] offset:{L_H+16}")
        e("s_waitcnt lgkmcnt(0)")

    w0_id = [0]

    def w0_block(fn):
        n = w0_id[0]; w0_id[0] += 1
        e(f"s_cmp_lg_u32 {S_W}, 0")
        e(f"s_cbranch_scc1 L_w0_{n}")
        return_q = fn()
        g.label(f"L_w0_{n}")

    p_ln, p1, p2 = P["p_ln"], P["p1"], P["p2"]
    assert ne <= p_ln <= p1 < p2 <= len(seq)
    for pos in range(ne, len(seq) + 1):
        if pos == p_ln:
            q0 = list(g.vmq)
            w0_block(ln1_pre)
            g.vmq = q0
        if pos == p1:
            e(f"s_cmp_lg_u32 {S_W}, 0")
            e("s_cbranch_scc1 L_w0_p1")
            if P["prio"]: e("s_setprio 3")
            issue_sc(False)
            if P["prio"]: e("s_setprio 0")
            stamp()
            g.label("L_w0_p1")
            mark = len(g.vmq)
            g.vmq.append("MARK")
        if pos == p2:
            idx = g.vmq.index("MARK")
            nafter = len(g.vmq) - 1 - idx
            g.vmq.pop(idx)
            q0 = list(g.vmq)
            e(f"s_cmp_lg_u32 {S_W}, 0")
            e("s_cbranch_scc1 L_w0_p2")
            e(f"s_waitcnt vmcnt({nafter})")
            poll(issue_sc, [17, 19, 21, 23, 25, 27, 29, 31], 32, 33, first_issued=True)
            stamp()
            h_compute()
            stamp()
            g.label("L_w0_p2")
            g.vmq = q0
        if pos == P["pf_pos"]:
            e("s_lshl_b32 s3, s2, 3")
            e(f"s_add_u32 s3, s3, {S_W}")
            e("s_lshl_b32 s3, s3, 10")
            e("v_lshlrev_b32 v60, 4, v0")
            e("v_add_u32 v60, s3, v60")
            for srdn in (SRD_WG, SRD_WU, SRD_WD):
                g.vm(f"buffer_load_dwordx4 v[{P['pf_reg']}:{P['pf_reg']+3}], v60, {srdn}, 0 offen {P['pf_flags']}", "pf")
        if pos < len(seq):
            issue(seq[pos])

    nvp = P["n_vpre"]

    def vreg(n):
        if n < 6: return VP + 4 * n
        if n < 22: return WB + 4 * (n - 6)
        return KB + 4 * (n - 22)

    def vload(n):
        kvload(SRD_V, n // 2, n % 2, vreg(n), f"v{n//2}_{n%2}")

    for n in range(nvp):
        vload(n)
    e("s_barrier")
    if P["qprio"]: e(f"s_setprio {P['qprio']}")
    stamp()

    e("v_lshrrev_b32 v3, 3, v0")
    e(f"s_lshr_b32 s3, {S_W}, 1")
    e("s_lshl_b32 s3, s3, 3")
    e("v_add_u32 v3, s3, v3")
    e("v_mul_u32_u24 v3, 80, v3")
    for k in range(4):
        e(f"ds_read_b128 v[{16+4*k}:{19+4*k}], v3 offset:{L_H + 16*k}")
    e("v_and_b32 v2, 7, v0")
    e("v_lshlrev_b32 v2, 5, v2")
    e("v_and_b32 v3, 16, v0")
    e("v_add_u32 v2, v2, v3")
    e(f"s_lshl_b32 s3, {S_W}, 8")
    e("v_add_u32 v3, s3, v2")
    e("s_waitcnt lgkmcnt(0)")

    def gemv_tile(j, val, breg, dreg, first, aset):
        a = 32 + 4 * aset
        for r in range(4):
            e(f"v_and_b32 v{a+r}, v{4+r}, v{val}")
        srcc = "0" if first else f"v[{dreg}:{dreg+3}]"
        e(f"v_mfma_f32_16x16x32_bf16 v[{dreg}:{dreg+3}], v[{a}:{a+3}], v[{breg}:{breg+3}], {srcc}")

    def fold(dreg, tmp):
        for r in range(4):
            e(f"v_mov_b32 v{tmp+r}, v{dreg+r}")
        for r in range(4):
            e(f"v_permlane32_swap_b32 v{dreg+r}, v{tmp+r}")
        for r in range(4):
            e(f"v_add_f32_dpp v{dreg+r}, v{tmp+r}, v{dreg+r} row_ror:8 {FULL}")

    nv = [nvp]
    for j in range(16):
        g.waitvm(f"wq{j}")
        gemv_tile(j, 16 + j, WB + 4 * j, 8 + 4 * (j & 1), j < 2, j & 1)
        if P["q_v"] and (j + 1) % (16 // P["q_v"]) == 0:
            assert nv[0] - 6 <= j or nv[0] < 6
            vload(nv[0]); nv[0] += 1
    for r in range(4):
        e(f"v_add_f32 v{8+r}, v{8+r}, v{12+r}")
    fold(8, 32)
    set_exec("0x00ff00ff", "0")
    e(f"ds_write_b128 v3, v[8:11] offset:{L_QP}")
    exec_all()
    e("v_lshlrev_b32 v3, 3, v0")
    e("v_and_b32 v36, 7, v0")
    e("v_lshlrev_b32 v36, 4, v36")
    e("s_waitcnt lgkmcnt(0)")
    e("s_barrier")
    for k in range(4):
        e(f"ds_read_b64 v[{16+2*k}:{17+2*k}], v3 offset:{L_QP + 512*k}")
    e("s_waitcnt lgkmcnt(2)")
    e("v_add_f32 v16, v16, v18")
    e("v_add_f32 v17, v17, v19")
    e("s_waitcnt lgkmcnt(0)")
    e("v_add_f32 v20, v20, v22")
    e("v_add_f32 v21, v21, v23")
    e("v_add_f32 v16, v16, v20")
    e("v_add_f32 v17, v17, v21")
    e("v_cvt_pk_bf16_f32 v16, v16, v17")
    for r in range(8):
        e(f"ds_bpermute_b32 v{8+r}, v36, v16 offset:{128*(r//4) + 4*(r%4)}")
    e("s_waitcnt lgkmcnt(0)")
    stamp()
    if P["dbg"]:
        e("v_and_b32 v3, 7, v0")
        e("v_lshlrev_b32 v3, 4, v3")
        e(f"s_lshl_b32 s3, s2, 9")
        e(f"s_add_u32 s3, s3, {WS_DBG}")
        g.vm(f"buffer_store_dwordx4 v[8:11], v3, {SRD_WS}, s3 offen", "dbg")
        g.vm(f"buffer_store_dwordx4 v[12:15], v3, {SRD_WS}, s3 offen offset:128", "dbg")

    for jp in range(0, 16, 2):
        tiles = (jp, jp + 1)
        g.waitvm(f"k{jp+1}")
        acc = {jp: 32, jp + 1: 33}
        for r in range(8):
            for j in tiles:
                h, rr = r // 4, r % 4
                src2 = "0" if r == 0 else f"v{acc[j]}"
                e(f"v_dot2_f32_bf16 v{acc[j]}, v{kreg(j,h)+rr}, v{8+r}, {src2}")
        dpp_all("v_add_f32", (32, 33), [f"quad_perm:[1,0,3,2] {FULL}", f"quad_perm:[2,3,0,1] {FULL}", f"row_half_mirror {FULL}"])
        rnd2(32, 33, 34)
        e(f"v_mul_f32 v32, {SCALE:#x}, v32")
        e(f"v_mul_f32 v33, {SCALE:#x}, v33")
        e("v_cvt_pk_bf16_f32 v34, v32, v33")
        e(f"v_lshlrev_b32 v{16+jp}, 16, v34")
        e(f"v_and_b32 v{17+jp}, {HI}, v34")
        if P["qk_v"] and (jp // 2 + 1) % (8 // P["qk_v"]) == 0:
            assert nv[0] < 22
            vload(nv[0]); nv[0] += 1
    e("v_max3_f32 v32, v16, v17, v18")
    e("v_max3_f32 v33, v19, v20, v21")
    e("v_max3_f32 v32, v32, v22, v23")
    e("v_max3_f32 v33, v33, v24, v25")
    e("v_max3_f32 v32, v32, v26, v27")
    e("v_max3_f32 v33, v33, v28, v29")
    e("v_max3_f32 v32, v32, v30, v31")
    e("v_max_f32 v32, v32, v33")
    dpp_all("v_max_f32", (32,), [f"row_ror:8 {FULL}"] + XROW)
    e("v_readlane_b32 s54, v32, 63")
    e("v_mov_b32 v33, s54")
    e(f"v_mul_f32 v33, {NLOG2E:#x}, v33")
    for j in range(16):
        e(f"v_fmamk_f32 v{16+j}, v{16+j}, {LOG2E:#x}, v33")
    for j in range(16):
        e(f"v_exp_f32 v{16+j}, v{16+j}")
    e("v_add_f32 v34, v16, v17")
    e("v_add_f32 v35, v18, v19")
    for j in range(4, 16, 2):
        e(f"v_add_f32 v34, v34, v{16+j}")
        e(f"v_add_f32 v35, v35, v{17+j}")
    e("v_add_f32 v34, v34, v35")
    for j in range(16):
        e(f"v_cvt_pk_bf16_f32 v{16+j}, v{16+j}, v{16+j}")
    dpp_all("v_add_f32", (34,), [f"row_ror:8 {FULL}"] + XROW)
    if P["prio"]: e("s_setprio 3")
    e("v_mov_b32 v36, s54")
    e(f"v_mov_b32 v37, {S_TAG}")
    e("v_mov_b32 v38, v34")
    e(f"v_mov_b32 v39, {S_TAG}")
    e(f"s_lshl_b32 s3, {S_X}, 5")
    e(f"s_add_u32 s3, s3, {S_I}")
    e("s_lshl_b32 s3, s3, 7")
    e(f"s_lshl_b32 s55, {S_W}, 4")
    e("s_add_u32 s3, s3, s55")
    e(f"s_add_u32 s3, s3, {WS_ML}")
    e("v_mov_b32 v3, 0")
    set_exec("0", "0x80000000")
    g.vm(f"buffer_store_dwordx4 v[36:39], v3, {SRD_WS}, s3 offen {STF}", "mlst")
    exec_all()
    if P["vprio_at"] >= 0: e("s_setprio 1")
    elif P["prio"] or P["qprio"]: e("s_setprio 0")
    stamp()

    WO = 168
    MLR = 232
    e("v_lshrrev_b32 v3, 3, v0")
    e("v_lshlrev_b32 v3, 14, v3")
    e("v_and_b32 v236, 7, v0")
    e("v_lshl_add_u32 v3, v236, 4, v3")
    e(f"s_lshl_b32 s3, {S_X}, 2")
    e(f"s_lshr_b32 s55, {S_I}, 3")
    e("s_add_u32 s3, s3, s55")
    e("s_lshl_b32 s56, s3, 10")
    e("s_lshl_b32 s3, s3, 17")
    e(f"s_lshl_b32 s55, {S_W}, 7")
    e("s_add_u32 s3, s3, s55")
    e("v_add_u32 v3, s3, v3")
    e("v_lshlrev_b32 v237, 4, v0")
    e(f"s_add_u32 s56, s56, {WS_ML}")

    def woload(j):
        r = WO + 4 * j
        off = j * 1024
        g.vm(f"buffer_load_dwordx4 v[{r}:{r+3}], v3, {SRD_WO}, {SOFF[(off//4096)*4096]} offen offset:{off%4096} {WF}", f"wo{j}")

    def issue_ml(track):
        f = g.vm if track else (lambda s, t=None: e(s))
        f(f"buffer_load_dwordx4 v[{MLR}:{MLR+3}], v237, {SRD_WS}, s56 offen {LD}", "poll")

    def pv(j):
        g.waitvm(f"v{j}_1")
        a = 32 + 4 * (j & 1)
        for r in range(4):
            e(f"v_and_b32 v{a+r}, v{4+r}, v{16+j}")
        lo, hi = vreg(2 * j), vreg(2 * j + 1)
        c0 = "0" if j == 0 else "v[8:11]"
        c1 = "0" if j == 0 else "v[12:15]"
        e(f"v_mfma_f32_16x16x32_bf16 v[8:11], v[{a}:{a+3}], v[{lo}:{lo+3}], {c0}")
        e(f"v_mfma_f32_16x16x32_bf16 v[12:15], v[{a}:{a+3}], v[{hi}:{hi+3}], {c1}")

    def ml_finish():
        m, l = MLR, MLR + 2
        e(f"v_mov_b32 v238, v{m}")
        dpp_all("v_max_f32", (238,), ROW16 + XROW)
        e("v_readlane_b32 s55, v238, 63")
        e(f"v_subrev_f32 v238, s55, v{m}")
        e(f"v_mul_f32 v238, {LOG2E:#x}, v238")
        e("v_exp_f32 v238, v238")
        e(f"v_mul_f32 v238, v238, v{l}")
        dpp_all("v_add_f32", (238,), ROW16 + XROW)
        e("v_readlane_b32 s57, v238, 63")
        e("v_mov_b32 v239, s54")
        e("v_subrev_f32 v239, s55, v239")
        e(f"v_mul_f32 v239, {LOG2E:#x}, v239")
        e("v_exp_f32 v239, v239")
        e("v_rcp_f32 v238, s57")
        e("v_mul_f32 v238, v238, v239")

    lagt = P["lagt"]
    nxt_v = nv[0]
    nxt_wo = 0
    done_pv = 0
    ml_issued = False
    while nxt_v < 32:
        vload(nxt_v); nxt_v += 1
        if nxt_v % 2 == 0:
            t = nxt_v // 2 - 1
            if t >= P["wo_start"]:
                for _ in range(P["wo_per"]):
                    if nxt_wo < 16:
                        woload(nxt_wo); nxt_wo += 1
            if t == P["vprio_at"]:
                e("s_setprio 0")
            if t == P["ml_at"]:
                issue_ml(True); ml_issued = True
            while done_pv <= t - lagt:
                pv(done_pv); done_pv += 1
    while nxt_wo < 16:
        woload(nxt_wo); nxt_wo += 1
    assert ml_issued
    if P["ticket"]:
        assert not P["ffn_early"]
        e(f"s_cmp_lg_u32 {S_W}, 0")
        e("s_cbranch_scc1 L_notick")
        e("v_mov_b32 v240, 1")
        e("v_mov_b32 v241, 0")
        set_exec("1", "0")
        e("global_atomic_add v240, v241, v240, s[52:53] sc0 sc1")
        exec_all()
        g.label("L_notick")
    fk = P["fork_at"] if P["ffn_early"] else 0
    assert fk <= P["ml_at"] + 1 and (fk >= 9 or not P["ffn_early"])
    while done_pv < fk:
        pv(done_pv); done_pv += 1
    K8 = stamp_n[0]
    K9 = K8 + 1 + (1 if P["o_st"] else 0)
    TS = K9 + 1
    GU = 64
    DN = 96
    S_SB, S_X2, S_ROLE = "s92", "s93", "s94"
    S_F = S_ROLE if P["ticket"] else "s2"

    def fold_publish(dreg, soff_reg, tmp):
        fold(dreg, tmp)
        e(f"v_cvt_pk_bf16_f32 v{tmp}, v{dreg}, v{dreg+1}")
        e(f"v_mov_b32 v{tmp+1}, {S_TAG}")
        e(f"v_cvt_pk_bf16_f32 v{tmp+2}, v{dreg+2}, v{dreg+3}")
        e(f"v_mov_b32 v{tmp+3}, {S_TAG}")
        set_exec("0x00ff00ff", "0")
        g.vm(f"buffer_store_dwordx4 v[{tmp}:{tmp+3}], v2, {SRD_WS}, {soff_reg} offen {STF}", "pub")
        exec_all()

    def issue_sb(track):
        f = g.vm if track else (lambda s, t=None: e(s))
        f(f"buffer_load_dwordx4 v[40:43], v1, {SRD_WS}, {S_SB} offen {LD}", "sbp")
        f(f"buffer_load_dwordx4 v[44:47], v1, {SRD_WS}, {S_SB} offen offset:16 {LD}", "sbp")
        f(f"buffer_load_dwordx4 v[48:51], v1, {SRD_WS}, {S_SB} offen offset:2048 {LD}", "sbp")
        f(f"buffer_load_dwordx4 v[52:55], v1, {SRD_WS}, {S_SB} offen offset:2064 {LD}", "sbp")

    def ffn_loads():
        e("v_lshrrev_b32 v1, 3, v0")
        e(f"s_lshl_b32 s3, {S_W}, 3")
        e("v_add_u32 v3, s3, v1")
        e(f"v_mul_u32_u24 v3, {8*2752}, v3")
        e("v_and_b32 v40, 3, v0")
        e("v_lshl_add_u32 v3, v40, 4, v3")
        e(f"s_lshl_b32 s3, {S_F}, 6")
        e("v_add_u32 v3, s3, v3")
        gu_so = ["0"] + [f"s{84+j}" for j in range(1, 8)]
        for j in range(1, 8):
            e(f"s_mov_b32 {gu_so[j]}, {j*2752}")
        set_exec("0x0f0f0f0f", "0x0f0f0f0f")
        for j in range(8):
            g.vm(f"buffer_load_dwordx4 v[{GU+4*j}:{GU+4*j+3}], v3, {SRD_WG}, {gu_so[j]} offen {WF}", f"gu{j}")
        set_exec("0xf0f0f0f0", "0xf0f0f0f0")
        for j in range(8):
            g.vm(f"buffer_load_dwordx4 v[{GU+4*j}:{GU+4*j+3}], v3, {SRD_WU}, {gu_so[j]} offen {WF}", f"gu{j}")
        exec_all()
        e("v_lshlrev_b32 v3, 12, v1")
        e("v_and_b32 v40, 7, v0")
        e("v_lshl_add_u32 v3, v40, 4, v3")
        e(f"s_lshl_b32 s3, {S_F}, 15")
        e(f"s_lshl_b32 s84, {S_W}, 7")
        e("s_add_u32 s3, s3, s84")
        e("v_add_u32 v3, s3, v3")
        for j in range(4):
            g.vm(f"buffer_load_dwordx4 v[{DN+4*j}:{DN+4*j+3}], v3, {SRD_WD}, 0 offen offset:{1024*j} {WF}", f"dn{j}")
        e("v_lshlrev_b32 v1, 5, v1")
        e(f"s_lshl_b32 s3, {S_W}, 8")
        e("v_add_u32 v1, s3, v1")
        e(f"s_mov_b32 {S_SB}, {WS_MOD + 3*2048}")
        e(f"s_mov_b32 {S_X2}, {WS_X2}")
        issue_sb(True)

    def attn_rest(sfx):
        d = done_pv
        while d <= P["ml_at"]:
            pv(d); d += 1
        poll(issue_ml, [MLR + 1, MLR + 3], 238, 239, first_issued=True)
        ml_finish()
        while d < 16:
            pv(d); d += 1
        stamp(K8)
        if P["prio"]: e("s_setprio 3")
        fold(8, 32)
        fold(12, 36)
        e(f"s_lshl_b32 s3, {S_W}, 9")
        e("v_add_u32 v36, s3, v2")
        for r in range(8):
            e(f"v_mul_f32 v{8+r}, v{8+r}, v238")
        set_exec("0x00ff00ff", "0")
        e(f"ds_write_b128 v36, v[8:11] offset:{L_OP}")
        e(f"ds_write_b128 v36, v[12:15] offset:{L_OP+256}")
        exec_all()
        if P["ticket"]:
            e(f"s_cmp_lg_u32 {S_W}, 0")
            e(f"s_cbranch_scc1 L_notick2{sfx}")
            e(f"v_mov_b32 v241, {L_TICK}")
            e("s_waitcnt vmcnt(0)")
            set_exec("1", "0")
            e("ds_write_b32 v241, v240")
            exec_all()
            g.label(f"L_notick2{sfx}")
        e("v_lshlrev_b32 v37, 3, v0")
        e("v_lshrrev_b32 v36, 3, v0")
        e("v_lshlrev_b32 v36, 5, v36")
        if P["ticket"]: e(f"v_mov_b32 v241, {L_TICK}")
        e("s_waitcnt lgkmcnt(0)")
        e("s_barrier")
        if P["o_st"]: stamp(K8 + 1)
        if P["ticket"]: e("ds_read_b32 v240, v241")
        for k in range(8):
            e(f"ds_read_b64 v[{16+2*k}:{17+2*k}], v37 offset:{L_OP + 512*k}")
        for k in range(0, 8, 2):
            e(f"s_waitcnt lgkmcnt({6-k})")
            e(f"v_add_f32 v{16+2*k}, v{16+2*k}, v{18+2*k}")
            e(f"v_add_f32 v{17+2*k}, v{17+2*k}, v{19+2*k}")
            if k % 4 == 2:
                e(f"v_add_f32 v{12+2*k}, v{12+2*k}, v{16+2*k}")
                e(f"v_add_f32 v{13+2*k}, v{13+2*k}, v{17+2*k}")
        e("v_add_f32 v16, v16, v24")
        e("v_add_f32 v17, v17, v25")
        e("v_cvt_pk_bf16_f32 v238, v16, v16")
        e("v_cvt_pk_bf16_f32 v239, v17, v17")
        if P["ticket"]: e(f"v_readfirstlane_b32 {S_ROLE}, v240")
        for j in range(16):
            e(f"ds_bpermute_b32 v{16+j}, v36, v{238 + (j & 1)} offset:{4*(j>>1)}")
        for j in range(16):
            g.waitvm(f"wo{j}")
            e(f"s_waitcnt lgkmcnt({15-j})")
            gemv_tile(j, 16 + j, WO + 4 * j, 8 + 4 * (j & 1), j < 2, j & 1)
        for r in range(4):
            e(f"v_add_f32 v{8+r}, v{8+r}, v{12+r}")
        e("s_lshl_b32 s3, s2, 11")
        e(f"s_lshl_b32 s55, {S_W}, 8")
        e("s_add_u32 s3, s3, s55")
        e(f"s_add_u32 s3, s3, {WS_YA}")
        fold_publish(8, "s3", 32)
        if P["prio"]: e("s_setprio 0")
        stamp(K9)
        if P["stamps"]:
            for k in range(TS, TS + 4):
                e(f"s_mov_b64 s[{STR[k]}:{STR[k]+1}], 0")

    if P["ffn_early"]:
        e("s_cmp_lt_u32 s2, 43")
        e("s_cbranch_scc1 L_ffn")
        fork_q = list(g.vmq)
        attn_rest("a")
    else:
        attn_rest("a")
        e(f"s_cmp_lt_u32 {S_F}, 43")
        e("s_cbranch_scc1 L_ffn")
        fork_q = list(g.vmq)
    if P["ticket"]:
        e(f"s_cmp_ge_u32 {S_ROLE}, 171")
        e("s_cbranch_scc1 L_fin")
    else:
        e("s_cmp_lt_u32 s2, 128")
        e("s_cbranch_scc1 L_fin")
    e(f"s_cmp_lg_u32 {S_W}, 0")
    e("s_cbranch_scc1 L_fin")
    if P["ticket"]:
        e(f"s_sub_u32 s3, {S_ROLE}, 43")
    else:
        e(f"s_lshl_b32 s3, {S_X}, 4")
        e(f"s_add_u32 s3, s3, {S_I}")
        e("s_sub_u32 s3, s3, 16")
    e("s_lshl_b32 s55, s3, 4")
    e("s_lshl_b32 s56, s3, 3")
    e("v_lshlrev_b32 v1, 11, v0")
    e("v_add_u32 v1, s55, v1")
    e(f"v_add_u32 v1, {WS_YA}, v1")
    e("v_mov_b32 v2, s55")
    e("v_mov_b32 v3, s56")
    for k in range(1, 4):
        e(f"s_mov_b32 s{52+k if k < 3 else 57}, {k*131072}")
    ya_so = ["0", "s53", "s54", "s57"]
    g.vm(f"buffer_load_dwordx4 v[40:43], v2, {SRD_WS}, 0 offen offset:{0} {LD}", "dummy") if False else None
    e(f"s_mov_b32 s59, {WS_MOD + 2*2048}")

    def issue_side(track):
        f = g.vm if track else (lambda s, t=None: e(s))
        f(f"buffer_load_dwordx4 v[40:43], v2, {SRD_WS}, s59 offen {LD}", "poll")
        f(f"buffer_load_dwordx4 v[44:47], v48, {SRD_WS}, s59 offen {LD}", "poll")

    e(f"v_add_u32 v48, {3*2048}, v2")
    g.vm(f"buffer_load_dwordx2 v[50:51], v3, {SRD_X}, 0 offen {WF}", "x4")

    def issue_ya(track):
        f = g.vm if track else (lambda s, t=None: e(s))
        for k in range(4):
            f(f"buffer_load_dwordx4 v[{64+4*k}:{67+4*k}], v1, {SRD_WS}, {ya_so[k]} offen {LD}", "poll")

    poll(issue_side, [41, 43, 45, 47], 52, 53)
    unpack(40, 56, 57); unpack(42, 58, 59)
    unpack(44, 60, 61); unpack(46, 62, 63)
    g.waitvm("x4")
    unpack(50, 52, 53); unpack(51, 54, 55)
    stamp(TS)
    poll(issue_ya, [65, 67, 69, 71, 73, 75, 77, 79], 80, 81)
    stamp(TS + 1)
    for k in range(4):
        b = 64 + 4 * k
        if k == 0:
            unpack(b, 84, 85); unpack(b + 2, 86, 87)
        else:
            unpack(b, 88, 89); unpack(b + 2, 90, 91)
            for r in range(4):
                e(f"v_add_f32 v{84+r}, v{84+r}, v{88+r}")
    dpp_all("v_add_f32", (84, 85, 86, 87), ROW16 + XROW)
    rnd2(84, 85, 88); rnd2(86, 87, 89)
    for r in range(4):
        e(f"v_mul_f32 v{84+r}, v{84+r}, v{56+r}")
    rnd2(84, 85, 88); rnd2(86, 87, 89)
    for r in range(4):
        e(f"v_add_f32 v{84+r}, v{84+r}, v{52+r}")
    e("v_cvt_pk_bf16_f32 v88, v84, v85")
    e(f"v_mov_b32 v89, {S_TAG}")
    e("v_cvt_pk_bf16_f32 v90, v86, v87")
    e(f"v_mov_b32 v91, {S_TAG}")
    e(f"s_mov_b32 s59, {WS_X2}")
    set_exec("0", "0x80000000")
    g.vm(f"buffer_store_dwordx4 v[88:91], v2, {SRD_WS}, s59 offen {STF}", "pub")
    exec_all()
    stamp(TS + 2)
    unpack(88, 84, 85); unpack(90, 86, 87)
    e("v_lshlrev_b32 v1, 11, v0")
    e("v_add_u32 v1, s55, v1")
    e(f"v_add_u32 v1, {WS_YC}, v1")
    e("v_mov_b32 v64, 0")
    e("v_mov_b32 v66, 0")
    e(f"v_mov_b32 v65, {S_TAG}")
    e(f"v_mov_b32 v67, {S_TAG}")

    def issue_yc(track):
        f = g.vm if track else (lambda s, t=None: e(s))
        set_exec("-1", "0x7ff")
        f(f"buffer_load_dwordx4 v[64:67], v1, {SRD_WS}, 0 offen {LD}", "poll")
        exec_all()

    poll(issue_yc, [65, 67], 80, 81)
    stamp(TS + 3)
    unpack(64, 68, 69); unpack(66, 70, 71)
    dpp_all("v_add_f32", (68, 69, 70, 71), ROW16 + XROW)
    rnd2(68, 69, 72); rnd2(70, 71, 73)
    for r in range(4):
        e(f"v_mul_f32 v{68+r}, v{68+r}, v{60+r}")
    rnd2(68, 69, 72); rnd2(70, 71, 73)
    for r in range(4):
        e(f"v_add_f32 v{68+r}, v{68+r}, v{84+r}")
    e("v_cvt_pk_bf16_f32 v72, v68, v69")
    e("v_cvt_pk_bf16_f32 v73, v70, v71")
    set_exec("0", "0x80000000")
    g.vm(f"buffer_store_dwordx2 v[72:73], v3, {SRD_OUT}, 0 offen", "out")
    e("s_cmp_lg_u32 s55, 0")
    e("s_cbranch_scc1 L_noep")
    e(f"v_mov_b32 v74, {S_EP}")
    e(f"buffer_store_dword v74, v2, {SRD_WS}, 0 offen {STF}")
    g.label("L_noep")
    exec_all()
    e("s_branch L_fin")

    g.label("L_ffn")
    g.vmq = list(fork_q)
    ffn_loads()
    if P["ffn_early"]:
        attn_rest("b")
    poll(issue_sb, [41, 43, 45, 47, 49, 51, 53, 55], 56, 57, first_issued=True, tag="sbp")
    for r in range(4):
        unpack(40 + 2 * r, 112 + 2 * r, 113 + 2 * r)
        unpack(48 + 2 * r, 120 + 2 * r, 121 + 2 * r)
    for k in range(8):
        e(f"v_add_f32 v{120+k}, 1.0, v{120+k}")
    for k in range(0, 8, 2):
        rnd2(120 + k, 121 + k, 56 + k // 2)

    def issue_x2(track):
        f = g.vm if track else (lambda s, t=None: e(s))
        f(f"buffer_load_dwordx4 v[40:43], v1, {SRD_WS}, {S_X2} offen {LD}", "poll")
        f(f"buffer_load_dwordx4 v[44:47], v1, {SRD_WS}, {S_X2} offen offset:16 {LD}", "poll")

    if not P["ffn_st"]: stamp(TS)
    poll(issue_x2, [41, 43, 45, 47], 56, 57)
    if not P["ffn_st"]: stamp(TS + 1)
    for r in range(4):
        unpack(40 + 2 * r, 48 + 2 * r, 49 + 2 * r)
    e("v_add_f32 v56, v48, v49")
    e("v_mul_f32 v57, v48, v48")
    for k in range(1, 8):
        if k >= 2:
            e(f"v_add_f32 v56, v56, v{48+k}")
        e(f"v_fmac_f32 v57, v{48+k}, v{48+k}")
    dpp_all("v_add_f32", (56, 57), [f"row_ror:8 {FULL}"] + XROW)
    e(f"v_mov_b32 v58, {L_STAT}")
    set_exec("0", "0x80000000")
    e("ds_add_f32 v58, v56")
    e("ds_add_f32 v58, v57 offset:4")
    exec_all()
    e("s_waitcnt lgkmcnt(0)")
    e("s_barrier")
    e("ds_read_b64 v[56:57], v58")
    e("s_waitcnt lgkmcnt(0)")
    ln_stats_finish(56, 57, 58)
    ln_apply(48, 56, 57, 58)
    for k in range(8):
        e(f"v_mul_f32 v{48+k}, v{48+k}, v{120+k}")
    for k in range(0, 8, 2):
        rnd2(48 + k, 49 + k, 58 + k // 2)
    for k in range(8):
        e(f"v_add_f32 v{48+k}, v{48+k}, v{112+k}")
    for k in range(8):
        e(f"v_cvt_pk_bf16_f32 v{48+k}, v{48+k}, v{48+k}")
    stamp(TS if P["ffn_st"] else TS + 2)
    for j in range(8):
        g.waitvm(f"gu{j}")
        gemv_tile(j, 48 + j, GU + 4 * j, 8 + 4 * (j & 1), j < 2, j & 1)
    if P["ffn_st"]: stamp(TS + 1)
    e(f"s_lshl_b32 s3, {S_W}, 8")
    e("v_add_u32 v40, s3, v2")
    for r in range(4):
        e(f"v_add_f32 v{8+r}, v{8+r}, v{12+r}")
    fold(8, 32)
    set_exec("0x00ff00ff", "0")
    e(f"ds_write_b128 v40, v[8:11] offset:{L_GUP}")
    exec_all()
    e("v_lshlrev_b32 v48, 2, v0")
    e("v_lshrrev_b32 v1, 3, v0")
    e("v_lshlrev_b32 v1, 4, v1")
    e("s_waitcnt lgkmcnt(0)")
    e("s_barrier")
    if P["ffn_st"]: stamp(TS + 2)
    for k in range(8):
        e(f"ds_read_b32 v{40+k}, v48 offset:{L_GUP + 256*k}")
    for k in range(0, 8, 2):
        e(f"s_waitcnt lgkmcnt({6-k})")
        e(f"v_add_f32 v{40+k}, v{40+k}, v{41+k}")
        if k % 4 == 2:
            e(f"v_add_f32 v{38+k}, v{38+k}, v{40+k}")
    e("v_add_f32 v40, v40, v44")
    rnd1(40)
    e("v_mov_b32 v41, v40")
    e("v_permlane32_swap_b32 v40, v41")
    e(f"v_mul_f32 v42, {NLOG2E:#x}, v40")
    e("v_exp_f32 v42, v42")
    e("v_add_f32 v42, 1.0, v42")
    e("v_rcp_f32 v42, v42")
    e("v_mul_f32 v40, v40, v42")
    rnd1(40)
    e("v_mul_f32 v40, v40, v41")
    e("v_cvt_pk_bf16_f32 v40, v40, v40")
    for j in range(4):
        e(f"ds_bpermute_b32 v{44+j}, v1, v40 offset:{4*j}")
    stamp(TS + 3)
    for j in range(4):
        g.waitvm(f"dn{j}")
        e(f"s_waitcnt lgkmcnt({3-j})")
        gemv_tile(j, 44 + j, DN + 4 * j, 8 + 4 * (j & 1), j < 2, j & 1)
    for r in range(4):
        e(f"v_add_f32 v{8+r}, v{8+r}, v{12+r}")
    e(f"s_lshl_b32 s3, {S_F}, 11")
    e(f"s_lshl_b32 s55, {S_W}, 8")
    e("s_add_u32 s3, s3, s55")
    e(f"s_add_u32 s3, s3, {WS_YC}")
    fold_publish(8, "s3", 32)

    g.label("L_fin")
    if P["stamps"]:
        e(f"s_memrealtime s[58:59]")
        e(f"s_add_u32 s3, {S_W}, 1")
        e("s_and_b32 s3, s3, 6")
        e("s_cbranch_scc1 L_end")
        e("s_waitcnt lgkmcnt(0)")
        e("s_lshl_b32 s3, s2, 8")
        e(f"s_lshl_b32 s52, {S_W}, 5")
        e("s_and_b32 s52, s52, 128")
        e("s_add_u32 s3, s3, s52")
        e(f"s_add_u32 s3, s3, {WS_STAMP}")
        e("v_mov_b32 v1, 0")
        e("s_mov_b32 exec_lo, 1")
        e("s_mov_b32 exec_hi, 0")
        for k in range(stamp_n[0]):
            e(f"v_mov_b32 v2, s{STR[k]}")
            e(f"v_mov_b32 v3, s{STR[k]+1}")
            e(f"buffer_store_dwordx2 v[2:3], v1, {SRD_WS}, s3 offen offset:{8*k}")
        e("v_mov_b32 v2, s58")
        e("v_mov_b32 v3, s59")
        e(f"buffer_store_dwordx2 v[2:3], v1, {SRD_WS}, s3 offen offset:{8*stamp_n[0]}")
        if P["ticket"]:
            e(f"v_mov_b32 v2, {S_ROLE}")
            e("v_mov_b32 v3, 0")
            e(f"buffer_store_dwordx2 v[2:3], v1, {SRD_WS}, s3 offen offset:120")
    g.label("L_end")
    e("s_endpgm")

    body = fix_hazards(g.lines, verbose=True)
    L = [HDR.rstrip(), f"; @launch grid=(256,1,1) block=(512,1,1) lds={LDS_BYTES}",
         '.amdgcn_target "amdgcn-amd-amdhsa--gfx950"', ".text", f".globl {NAME}_kernel", ".p2align 8",
         f".type {NAME}_kernel,@function", f"{NAME}_kernel:"]
    L += body
    L += ['.section .rodata,"a"', ".p2align 6", f".amdhsa_kernel {NAME}_kernel",
          "  .amdhsa_next_free_vgpr 256", "  .amdhsa_next_free_sgpr 102", "  .amdhsa_accum_offset 256",
          "  .amdhsa_group_segment_fixed_size 0", "  .amdhsa_kernarg_size 112", "  .amdhsa_user_sgpr_count 2",
          "  .amdhsa_user_sgpr_kernarg_segment_ptr 1", "  .amdhsa_system_sgpr_workgroup_id_x 1", ".end_amdhsa_kernel"]
    return "\n".join(L) + "\n"


if __name__ == "__main__":
    import argparse
    ap = argparse.ArgumentParser()
    ap.add_argument("-o", default=f"cdna_kernels/{NAME}.s")
    ap.add_argument("opts", nargs="*")
    a = ap.parse_args()
    kw = {}
    for o in a.opts:
        k, v = o.split("=", 1)
        if v in ("True", "False"):
            v = v == "True"
        else:
            try:
                v = int(v, 0)
            except ValueError:
                pass
        kw[k] = v
    open(a.o, "w").write(gen(**kw))
    print("wrote", a.o)
```

```python
import sys, os
sys.path.insert(0, os.path.dirname(os.path.abspath(__file__)))
from asmlib import G, fix_hazards

NAME = "adaLN_cond__gqa_block_cached__swiglu_ffn__decode"
HDR = open("cdna_kernels/%s.s.ref" % NAME).read().split("; Override launch")[0]

WS_MOD = 0x1000
WS_X2 = 0x4000
WS_ML = 0x8000
WS_YC = 0x10000
WS_YA = 0x40000
WS_DBG = 0x100000
WS_STAMP = 0x8000000
L_MOD = 0
L_STAT = 64
L_GU = 128
L_Q = 384
L_O = 896
L_H = 2048
LDS_BYTES = 5120

LOG2E = 0x3fb8aa3b
NLOG2E = 0xbfb8aa3b
SCALE = 0x3db504f3
INV512 = 0x3b000000
EPS = 0x3727c5ac
HI = "0xffff0000"
VALID_LO, VALID_HI = "0x00ff00ff", "0xff00ff00"

SRD_K, SRD_V, SRD_WQ, SRD_WO, SRD_WM, SRD_WS, SRD_WG, SRD_WU, SRD_WD, SRD_X, SRD_C, SRD_OUT = \
    [f"s[{a}:{a+3}]" for a in range(4, 52, 4)]
S_W, S_TAG, S_EP, S_X, S_I = "s97", "s98", "s99", "s100", "s101"
SOFF = {0: "0"}
for k in range(1, 8):
    SOFF[4096 * k] = f"s{77 + k}"
for j in range(4, 16):
    SOFF[8192 * j] = f"s{85 + j - 4}"
STR = [62, 60, 64, 66, 68, 70, 72, 74, 76, 78, 80, 82, 84, 86, 88]

DEF = dict(
    kv_flags="nt", w_flags="nt", ld_flags="sc1", st_flags="sc0 sc1",
    n_early=6,
    n_vpre=6,
    lagt=4,
    ml_at=13,
    p_ln=8, p1=24, p2=36, wq_first=True, prio=True, cpf=True, wo_per=2, wo_start=0, qk_v=4, q_v=4, qprio=0, vprio_at=-1,
    stamps=False, dbg=False, timeout=200000, sleep=1,
)


def gen(**kw):
    P = dict(DEF); P.update(kw)
    g = G()
    e = g.e
    stamp_n = [0]

    def stamp(idx=None):
        if P["stamps"]:
            k = stamp_n[0] if idx is None else idx
            assert k < len(STR)
            e(f"s_memrealtime s[{STR[k]}:{STR[k]+1}]")
            stamp_n[0] = max(stamp_n[0], k + 1)

    def set_exec(lo, hi):
        e(f"s_mov_b32 exec_lo, {lo}")
        e(f"s_mov_b32 exec_hi, {hi}")

    def exec_all():
        e("s_mov_b64 exec, -1")

    def dpp_all(op, regs, steps):
        for st in steps:
            for r in regs:
                e(f"{op}_dpp v{r}, v{r}, v{r} {st}")

    FULL = "row_mask:0xf bank_mask:0xf"
    ROW16 = [f"row_ror:8 {FULL}", f"row_ror:4 {FULL}", f"row_ror:2 {FULL}", f"row_ror:1 {FULL}"]
    XROW = ["row_bcast:15 row_mask:0xa bank_mask:0xf", "row_bcast:31 row_mask:0xc bank_mask:0xf"]

    def rnd2(a, b, t):
        e(f"v_cvt_pk_bf16_f32 v{t}, v{a}, v{b}")
        e(f"v_lshlrev_b32 v{a}, 16, v{t}")
        e(f"v_and_b32 v{b}, {HI}, v{t}")

    def rnd1(a, t=None):
        e(f"v_cvt_pk_bf16_f32 v{a}, v{a}, v{a}")
        e(f"v_and_b32 v{a}, {HI}, v{a}")

    def unpack(src, lo, hi):
        e(f"v_lshlrev_b32 v{lo}, 16, v{src}")
        e(f"v_and_b32 v{hi}, {HI}, v{src}")

    def tagcheck(tagregs, t0, t1, fail_label_cond):
        rs = list(tagregs)
        if len(rs) == 2:
            e(f"v_xor_b32 v{t0}, {S_TAG}, v{rs[0]}")
            e(f"v_xor_b32 v{t1}, {S_TAG}, v{rs[1]}")
            e(f"v_or_b32 v{t0}, v{t0}, v{t1}")
        else:
            e(f"v_min3_u32 v{t0}, v{rs[0]}, v{rs[1]}, v{rs[2]}")
            e(f"v_max3_u32 v{t1}, v{rs[0]}, v{rs[1]}, v{rs[2]}")
            k = 3
            while k < len(rs):
                if k + 1 < len(rs):
                    e(f"v_min3_u32 v{t0}, v{t0}, v{rs[k]}, v{rs[k+1]}")
                    e(f"v_max3_u32 v{t1}, v{t1}, v{rs[k]}, v{rs[k+1]}")
                    k += 2
                else:
                    e(f"v_min_u32 v{t0}, v{t0}, v{rs[k]}")
                    e(f"v_max_u32 v{t1}, v{t1}, v{rs[k]}")
                    k += 1
            e(f"v_xor_b32 v{t0}, {S_TAG}, v{t0}")
            e(f"v_xor_b32 v{t1}, {S_TAG}, v{t1}")
            e(f"v_or_b32 v{t0}, v{t0}, v{t1}")
        e(f"v_cmp_ne_u32 vcc, 0, v{t0}")
        e("s_cmp_lg_u64 vcc, 0")

    poll_id = [0]

    def poll(issue, tagregs, t0, t1, first_issued=False, between=None):
        n = poll_id[0]; poll_id[0] += 1
        if not first_issued:
            issue(True)
        if between:
            between()
        g.waitvm("poll")
        tagcheck(tagregs, t0, t1, None)
        e(f"s_cbranch_scc0 L_pok{n}")
        e(f"s_mov_b32 s58, {P['timeout']}")
        g.label(f"L_pl{n}")
        if P["sleep"]:
            e(f"s_sleep {P['sleep']}")
        issue(False)
        e("s_waitcnt vmcnt(0)")
        tagcheck(tagregs, t0, t1, None)
        e(f"s_cbranch_scc0 L_pok{n}")
        e("s_sub_u32 s58, s58, 1")
        e("s_cmp_lg_u32 s58, 0")
        e(f"s_cbranch_scc1 L_pl{n}")
        g.label(f"L_pok{n}")

    LD = P["ld_flags"]; STF = P["st_flags"]; KVF = P["kv_flags"]; WF = P["w_flags"]

    e("s_cmp_ge_u32 s2, 256")
    e("s_cbranch_scc1 L_end")
    e("s_load_dwordx16 s[52:67], s[0:1], 0")
    e("s_load_dwordx8 s[68:75], s[0:1], 64")
    e("s_load_dwordx2 s[76:77], s[0:1], 104")
    if P["cpf"]:
        e("s_getpc_b64 s[78:79]")
        g.label("L_pc")
    e("v_lshlrev_b32 v1, 2, v0")
    e("v_mov_b32 v2, 0")
    e("ds_write_b32 v1, v2")
    e("v_lshrrev_b32 v1, 6, v0")
    e("v_and_b32 v0, 63, v0")
    e(f"v_readfirstlane_b32 {S_W}, v1")
    e(f"s_and_b32 {S_X}, s2, 7")
    e(f"s_lshr_b32 {S_I}, s2, 3")
    if P["cpf"]:
        e(f"s_sub_u32 s3, {S_I}, 24")
        e("s_cbranch_scc1 L_nocpf")
        e("s_lshl_b32 s3, s3, 3")
        e(f"s_add_u32 s3, s3, {S_W}")
        e("s_lshl_b32 s3, s3, 10")
        e("s_cmp_ge_u32 s3, L_end-L_pc")
        e("s_cbranch_scc1 L_nocpf")
        e("v_lshlrev_b32 v1, 4, v0")
        e("v_add_u32 v1, s3, v1")
        e("v_min_u32 v1, L_end-L_pc-16, v1")
        e("global_load_dwordx4 v[252:255], v1, s[78:79]")
        g.label("L_nocpf")
    for off, r in SOFF.items():
        if off:
            e(f"s_mov_b32 {r}, {off}")
    e("v_and_b32 v1, 1, v0")
    e("v_lshlrev_b32 v1, 4, v1")
    e("v_mov_b32 v2, 0xffff")
    e("v_lshlrev_b32 v1, v1, v2")
    e("v_bfe_u32 v2, v0, 1, 2")
    for r in range(4):
        e(f"v_cmp_eq_u32 vcc, {r}, v2")
        e(f"v_cndmask_b32 v{4+r}, 0, v1, vcc")
    e("v_lshrrev_b32 v3, 3, v0")
    e("v_and_b32 v2, 7, v0")
    e("v_lshlrev_b32 v2, 4, v2")
    e("v_lshl_add_u32 v1, v3, 8, v2")
    e(f"s_lshl_b32 s3, {S_X}, 5")
    e(f"s_add_u32 s3, s3, {S_I}")
    e("s_lshl_b32 s3, s3, 18")
    e(f"s_lshl_b32 vcc_lo, {S_W}, 15")
    e("s_add_u32 s3, s3, vcc_lo")
    e("v_add_u32 v1, s3, v1")
    e("v_lshl_add_u32 v2, v3, 17, v2")
    e(f"s_lshr_b32 s3, {S_W}, 1")
    e("s_lshl_b32 s3, s3, 20")
    e(f"s_lshl_b32 vcc_lo, {S_X}, 2")
    e(f"s_lshr_b32 vcc_hi, {S_I}, 3")
    e("s_add_u32 vcc_lo, vcc_lo, vcc_hi")
    e("s_lshl_b32 vcc_lo, vcc_lo, 8")
    e("s_add_u32 s3, s3, vcc_lo")
    e(f"s_and_b32 vcc_lo, {S_W}, 1")
    e("s_lshl_b32 vcc_lo, vcc_lo, 7")
    e("s_add_u32 s3, s3, vcc_lo")
    e("v_add_u32 v2, s3, v2")
    e("v_lshrrev_b32 v3, 1, v0")
    e("v_mul_u32_u24 v18, 12288, v3")
    e("v_and_b32 v19, 1, v0")
    e("v_lshl_add_u32 v18, v19, 4, v18")
    e(f"s_mul_i32 s3, {S_W}, {64*6144}")
    e(f"s_lshr_b32 vcc_lo, {S_I}, 2")
    e("s_lshl_b32 vcc_lo, vcc_lo, 10")
    e("s_add_u32 s3, s3, vcc_lo")
    e(f"s_lshl_b32 vcc_lo, {S_X}, 7")
    e("s_add_u32 s3, s3, vcc_lo")
    e(f"s_and_b32 vcc_lo, {S_I}, 3")
    e("s_lshl_b32 vcc_lo, vcc_lo, 5")
    e("s_add_u32 s3, s3, vcc_lo")
    e("v_add_u32 v18, s3, v18")
    e("v_lshlrev_b32 v19, 2, v3")
    e(f"s_lshl_b32 s3, {S_W}, 7")
    e("v_add_u32 v19, s3, v19")
    e("v_lshlrev_b32 v3, 4, v0")
    e("s_waitcnt lgkmcnt(0)")
    e("s_barrier")
    stamp()

    def srd(base, plo, size):
        e(f"s_mov_b32 s{base}, s{plo}")
        e(f"s_and_b32 s{base+1}, s{plo+1}, 0xffff")
        e(f"s_mov_b32 s{base+2}, {size}")
        e(f"s_mov_b32 s{base+3}, 0x20000")

    srd(44, 70, 1024)
    srd(20, 72, 3145728)
    e(f"s_cmp_lt_u32 {S_I}, 24")
    e("s_cselect_b32 s22, s22, 0")
    g.vm(f"buffer_load_dword v16, v19, {SRD_C}, 0 offen", "c")
    e(f"s_mov_b32 s3, 6144")
    g.vm(f"buffer_load_dwordx4 v[20:23], v18, {SRD_WM}, 0 offen {WF}", "wm")
    g.vm(f"buffer_load_dwordx4 v[24:27], v18, {SRD_WM}, s3 offen {WF}", "wm")
    srd(4, 54, 67108864)
    srd(12, 58, 4194304)
    srd(24, 76, 268435456)
    e("s_load_dword s99, s[76:77], 0")
    srd(40, 52, 1024)

    KB, WB, VP = 128, 64, 40

    def kreg(j, h): return KB + 8 * j + 4 * h

    def kvload(srdname, j, h, reg, tag):
        off = j * 2048 + h * 128
        so = SOFF[(off // 4096) * 4096]
        g.vm(f"buffer_load_dwordx4 v[{reg}:{reg+3}], v1, {srdname}, {so} offen offset:{off % 4096} {KVF}", tag)

    def wqload(j):
        r = WB + 4 * j
        g.vm(f"buffer_load_dwordx4 v[{r}:{r+3}], v2, {SRD_WQ}, {SOFF[8192*j]} offen {WF}", f"wq{j}")

    seq = []
    ks = [("k", j, h) for j in range(16) for h in range(2)]
    qs = [("q", j) for j in range(16)]
    if P["wq_first"]:
        for n in range(16):
            seq += [ks[n], qs[n]]
        seq += ks[16:]
    else:
        for j in range(16):
            seq += [ks[2*j], ks[2*j+1], qs[j]]

    def issue(item):
        if item[0] == "k":
            kvload(SRD_K, item[1], item[2], kreg(item[1], item[2]), f"k{item[1]}")
        else:
            wqload(item[1])

    ne = P["n_early"]
    for it in seq[:2]:
        issue(it)
    g.vm(f"buffer_load_dwordx4 v[40:43], v3, {SRD_X}, 0 offen", "x")
    for it in seq[2:ne]:
        issue(it)
    srd(8, 56, 67108864)
    srd(16, 60, 4194304)
    srd(28, 64, 1409024)
    srd(32, 66, 1409024)
    srd(36, 68, 1409024)
    srd(48, 74, 1024)
    e(f"s_mov_b32 s52, 0x05040100")
    e(f"s_mov_b32 s53, 0x07060302")

    g.waitvm("c")
    unpack(16, 28, 29)
    for r in (28, 29):
        e(f"v_mul_f32 v{r+2}, {NLOG2E:#x}, v{r}")
    for r in (28, 29):
        e(f"v_exp_f32 v{r+2}, v{r+2}")
    for r in (28, 29):
        e(f"v_add_f32 v{r+2}, 1.0, v{r+2}")
    for r in (28, 29):
        e(f"v_rcp_f32 v{r+2}, v{r+2}")
    for r in (28, 29):
        e(f"v_mul_f32 v{r}, v{r}, v{r+2}")
    e("v_cvt_pk_bf16_f32 v17, v28, v29")
    g.waitvm("wm")
    for r in range(4):
        e(f"v_perm_b32 v{28+2*r}, v{24+r}, v{20+r}, s52")
        e(f"v_perm_b32 v{29+2*r}, v{24+r}, v{20+r}, s53")
    for k in range(8):
        e(f"v_dot2_f32_bf16 v{8+k}, v{28+k}, v17, 0")
    dpp_all("v_add_f32", range(8, 16), [f"quad_perm:[2,3,0,1] {FULL}", f"row_ror:4 {FULL}", f"row_ror:8 {FULL}"])
    e("v_and_b32 v19, 1, v0")
    e("v_lshlrev_b32 v19, 5, v19")
    set_exec("0x00030003", "0x00030003")
    for k in range(8):
        e(f"ds_add_f32 v19, v{8+k} offset:{L_MOD + 4*k}")
    exec_all()
    e("s_waitcnt lgkmcnt(0)")
    e(f"s_add_u32 {S_EP}, {S_EP}, 1")
    e(f"s_mul_i32 {S_TAG}, {S_EP}, 0x9E3779B1")
    e("s_barrier")
    stamp()

    e(f"s_cmp_lg_u32 {S_W}, 0")
    e("s_cbranch_scc1 L_nopub")
    e(f"s_cmp_ge_u32 {S_I}, 24")
    e("s_cbranch_scc1 L_nopub")
    if P["prio"]: e("s_setprio 3")
    e("v_lshlrev_b32 v28, 4, v0")
    set_exec("0xf", "0")
    e(f"ds_read_b128 v[16:19], v28 offset:{L_MOD}")
    e(f"s_lshr_b32 s3, {S_I}, 2")
    e("s_lshl_b32 s3, s3, 11")
    e(f"s_lshl_b32 s54, {S_X}, 8")
    e("s_add_u32 s3, s3, s54")
    e(f"s_and_b32 s54, {S_I}, 3")
    e("s_lshl_b32 s54, s54, 6")
    e("s_add_u32 s3, s3, s54")
    e(f"s_add_u32 s3, s3, {WS_MOD}")
    e(f"v_mov_b32 v21, {S_TAG}")
    e(f"v_mov_b32 v23, {S_TAG}")
    e("s_waitcnt lgkmcnt(0)")
    e("v_cvt_pk_bf16_f32 v20, v16, v17")
    e("v_cvt_pk_bf16_f32 v22, v18, v19")
    e(f"buffer_store_dwordx4 v[20:23], v28, {SRD_WS}, s3 offen {STF}")
    exec_all()
    if P["prio"]: e("s_setprio 0")
    g.label("L_nopub")

    def issue_sc(track):
        f = g.vm if track else (lambda s, t=None: e(s))
        f(f"buffer_load_dwordx4 v[16:19], v3, {SRD_WS}, 0 offen offset:2048 {LD}", "poll")
        f(f"buffer_load_dwordx4 v[20:23], v3, {SRD_WS}, 0 offen offset:2064 {LD}", "poll")
        f(f"buffer_load_dwordx4 v[24:27], v3, {SRD_WS}, 0 offen offset:0 {LD}", "poll")
        f(f"buffer_load_dwordx4 v[28:31], v3, {SRD_WS}, 0 offen offset:16 {LD}", "poll")

    def ln_stats_finish(tm, tv, t):
        e(f"v_mul_f32 v{tm}, {INV512:#x}, v{tm}")
        e(f"v_mul_f32 v{tv}, {INV512:#x}, v{tv}")
        e(f"v_fma_f32 v{tv}, -v{tm}, v{tm}, v{tv}")
        rnd2(tm, tv, t)
        e(f"v_add_f32 v{tv}, {EPS:#x}, v{tv}")
        rnd1(tv)
        e(f"v_sqrt_f32 v{tv}, v{tv}")
        rnd1(tv)
        e(f"v_rcp_f32 v{tv}, v{tv}")

    def ln_apply(xf, tm, tv, t):
        for k in range(8):
            e(f"v_sub_f32 v{xf+k}, v{xf+k}, v{tm}")
        for k in range(0, 8, 2):
            rnd2(xf + k, xf + k + 1, t + k // 2)
        for k in range(8):
            e(f"v_mul_f32 v{xf+k}, v{xf+k}, v{tv}")
        for k in range(0, 8, 2):
            rnd2(xf + k, xf + k + 1, t + k // 2)

    def ln1_pre():
        g.waitvm("x")
        for r in range(4):
            unpack(40 + r, 8 + 2 * r, 9 + 2 * r)
        e("v_add_f32 v32, v8, v9")
        e("v_mul_f32 v33, v8, v8")
        for k in range(1, 8):
            if k >= 2:
                e(f"v_add_f32 v32, v32, v{8+k}")
            e(f"v_fmac_f32 v33, v{8+k}, v{8+k}")
        dpp_all("v_add_f32", (32, 33), ROW16 + XROW)
        e("v_readlane_b32 s54, v32, 63")
        e("v_readlane_b32 s55, v33, 63")
        e("v_mov_b32 v32, s54")
        e("v_mov_b32 v33, s55")
        ln_stats_finish(32, 33, 34)
        ln_apply(8, 32, 33, 34)
        e("v_lshlrev_b32 v3, 5, v0")
        e(f"v_add_u32 v3, {WS_MOD}, v3")

    def h_compute():
        for r in range(4):
            unpack(16 + 2 * r, 44 + 2 * r, 45 + 2 * r)
        for k in range(8):
            e(f"v_add_f32 v{44+k}, 1.0, v{44+k}")
        for k in range(0, 8, 2):
            rnd2(44 + k, 45 + k, 34 + k // 2)
        for k in range(8):
            e(f"v_mul_f32 v{8+k}, v{8+k}, v{44+k}")
        for k in range(0, 8, 2):
            rnd2(8 + k, 9 + k, 34 + k // 2)
        for r in range(4):
            unpack(24 + 2 * r, 44 + 2 * r, 45 + 2 * r)
        for k in range(8):
            e(f"v_add_f32 v{8+k}, v{8+k}, v{44+k}")
        for k in range(8):
            e(f"v_cvt_pk_bf16_f32 v{52+k}, v{8+k}, v{8+k}")
        e("v_lshrrev_b32 v32, 1, v0")
        e("v_mul_u32_u24 v32, 80, v32")
        e("v_and_b32 v33, 1, v0")
        e("v_lshl_add_u32 v32, v33, 5, v32")
        e(f"ds_write_b128 v32, v[52:55] offset:{L_H}")
        e(f"ds_write_b128 v32, v[56:59] offset:{L_H+16}")
        e("s_waitcnt lgkmcnt(0)")

    w0_id = [0]

    def w0_block(fn):
        n = w0_id[0]; w0_id[0] += 1
        e(f"s_cmp_lg_u32 {S_W}, 0")
        e(f"s_cbranch_scc1 L_w0_{n}")
        return_q = fn()
        g.label(f"L_w0_{n}")

    p_ln, p1, p2 = P["p_ln"], P["p1"], P["p2"]
    assert ne <= p_ln <= p1 < p2 <= len(seq)
    for pos in range(ne, len(seq) + 1):
        if pos == p_ln:
            q0 = list(g.vmq)
            w0_block(ln1_pre)
            g.vmq = q0
        if pos == p1:
            e(f"s_cmp_lg_u32 {S_W}, 0")
            e("s_cbranch_scc1 L_w0_p1")
            if P["prio"]: e("s_setprio 3")
            issue_sc(False)
            if P["prio"]: e("s_setprio 0")
            stamp()
            g.label("L_w0_p1")
            mark = len(g.vmq)
            g.vmq.append("MARK")
        if pos == p2:
            idx = g.vmq.index("MARK")
            nafter = len(g.vmq) - 1 - idx
            g.vmq.pop(idx)
            q0 = list(g.vmq)
            e(f"s_cmp_lg_u32 {S_W}, 0")
            e("s_cbranch_scc1 L_w0_p2")
            e(f"s_waitcnt vmcnt({nafter})")
            poll(issue_sc, [17, 19, 21, 23, 25, 27, 29, 31], 32, 33, first_issued=True)
            stamp()
            h_compute()
            stamp()
            g.label("L_w0_p2")
            g.vmq = q0
        if pos < len(seq):
            issue(seq[pos])

    nvp = P["n_vpre"]

    def vreg(n):
        if n < 6: return VP + 4 * n
        if n < 22: return WB + 4 * (n - 6)
        return KB + 4 * (n - 22)

    def vload(n):
        kvload(SRD_V, n // 2, n % 2, vreg(n), f"v{n//2}_{n%2}")

    for n in range(nvp):
        vload(n)
    e("s_barrier")
    if P["qprio"]: e(f"s_setprio {P['qprio']}")
    stamp()

    e("v_lshrrev_b32 v3, 3, v0")
    e(f"s_lshr_b32 s3, {S_W}, 1")
    e("s_lshl_b32 s3, s3, 3")
    e("v_add_u32 v3, s3, v3")
    e("v_mul_u32_u24 v3, 80, v3")
    for k in range(4):
        e(f"ds_read_b128 v[{16+4*k}:{19+4*k}], v3 offset:{L_H + 16*k}")
    e("v_and_b32 v2, 7, v0")
    e("v_lshlrev_b32 v2, 5, v2")
    e("v_and_b32 v3, 16, v0")
    e("v_add_u32 v2, v2, v3")
    e(f"s_and_b32 s3, {S_W}, 1")
    e("s_lshl_b32 s3, s3, 8")
    e("v_add_u32 v3, s3, v2")
    e("s_waitcnt lgkmcnt(0)")

    def gemv_tile(j, val, breg, dreg, first, aset):
        a = 32 + 4 * aset
        for r in range(4):
            e(f"v_and_b32 v{a+r}, v{4+r}, v{val}")
        srcc = "0" if first else f"v[{dreg}:{dreg+3}]"
        e(f"v_mfma_f32_16x16x32_bf16 v[{dreg}:{dreg+3}], v[{a}:{a+3}], v[{breg}:{breg+3}], {srcc}")

    nv = [nvp]
    for j in range(16):
        g.waitvm(f"wq{j}")
        gemv_tile(j, 16 + j, WB + 4 * j, 8, j == 0, j & 1)
        if P["q_v"] and (j + 1) % (16 // P["q_v"]) == 0:
            assert nv[0] - 6 <= j or nv[0] < 6
            vload(nv[0]); nv[0] += 1
    set_exec(VALID_LO, VALID_HI)
    for r in range(4):
        e(f"ds_add_f32 v3, v{8+r} offset:{L_Q + 4*r}")
    exec_all()
    e("s_waitcnt lgkmcnt(0)")
    e("s_barrier")
    e("v_and_b32 v3, 7, v0")
    e("v_lshlrev_b32 v3, 5, v3")
    e(f"ds_read_b128 v[16:19], v3 offset:{L_Q}")
    e(f"ds_read_b128 v[20:23], v3 offset:{L_Q+16}")
    e(f"ds_read_b128 v[24:27], v3 offset:{L_Q+256}")
    e(f"ds_read_b128 v[28:31], v3 offset:{L_Q+272}")
    e("s_waitcnt lgkmcnt(0)")
    for r in range(8):
        e(f"v_cvt_pk_bf16_f32 v{8+r}, v{16+2*r}, v{17+2*r}")
    stamp()
    if P["dbg"]:
        e("v_and_b32 v3, 7, v0")
        e("v_lshlrev_b32 v3, 4, v3")
        e(f"s_lshl_b32 s3, s2, 9")
        e(f"s_add_u32 s3, s3, {WS_DBG}")
        g.vm(f"buffer_store_dwordx4 v[8:11], v3, {SRD_WS}, s3 offen", "dbg")
        g.vm(f"buffer_store_dwordx4 v[12:15], v3, {SRD_WS}, s3 offen offset:128", "dbg")

    for jp in range(0, 16, 2):
        tiles = (jp, jp + 1)
        g.waitvm(f"k{jp+1}")
        acc = {jp: 32, jp + 1: 33}
        for r in range(8):
            for j in tiles:
                h, rr = r // 4, r % 4
                src2 = "0" if r == 0 else f"v{acc[j]}"
                e(f"v_dot2_f32_bf16 v{acc[j]}, v{kreg(j,h)+rr}, v{8+r}, {src2}")
        dpp_all("v_add_f32", (32, 33), [f"quad_perm:[1,0,3,2] {FULL}", f"quad_perm:[2,3,0,1] {FULL}", f"row_half_mirror {FULL}"])
        rnd2(32, 33, 34)
        e(f"v_mul_f32 v32, {SCALE:#x}, v32")
        e(f"v_mul_f32 v33, {SCALE:#x}, v33")
        e("v_cvt_pk_bf16_f32 v34, v32, v33")
        e(f"v_lshlrev_b32 v{16+jp}, 16, v34")
        e(f"v_and_b32 v{17+jp}, {HI}, v34")
        if P["qk_v"] and (jp // 2 + 1) % (8 // P["qk_v"]) == 0:
            assert nv[0] < 22
            vload(nv[0]); nv[0] += 1
    e("v_max3_f32 v32, v16, v17, v18")
    e("v_max3_f32 v33, v19, v20, v21")
    e("v_max3_f32 v32, v32, v22, v23")
    e("v_max3_f32 v33, v33, v24, v25")
    e("v_max3_f32 v32, v32, v26, v27")
    e("v_max3_f32 v33, v33, v28, v29")
    e("v_max3_f32 v32, v32, v30, v31")
    e("v_max_f32 v32, v32, v33")
    dpp_all("v_max_f32", (32,), [f"row_ror:8 {FULL}"] + XROW)
    e("v_readlane_b32 s54, v32, 63")
    e("v_mov_b32 v33, s54")
    e(f"v_mul_f32 v33, {NLOG2E:#x}, v33")
    for j in range(16):
        e(f"v_fmamk_f32 v{16+j}, v{16+j}, {LOG2E:#x}, v33")
    for j in range(16):
        e(f"v_exp_f32 v{16+j}, v{16+j}")
    e("v_add_f32 v34, v16, v17")
    e("v_add_f32 v35, v18, v19")
    for j in range(4, 16, 2):
        e(f"v_add_f32 v34, v34, v{16+j}")
        e(f"v_add_f32 v35, v35, v{17+j}")
    e("v_add_f32 v34, v34, v35")
    for j in range(16):
        e(f"v_cvt_pk_bf16_f32 v{16+j}, v{16+j}, v{16+j}")
    dpp_all("v_add_f32", (34,), [f"row_ror:8 {FULL}"] + XROW)
    if P["prio"]: e("s_setprio 3")
    e("v_mov_b32 v36, s54")
    e(f"v_mov_b32 v37, {S_TAG}")
    e("v_mov_b32 v38, v34")
    e(f"v_mov_b32 v39, {S_TAG}")
    e(f"s_lshl_b32 s3, {S_X}, 5")
    e(f"s_add_u32 s3, s3, {S_I}")
    e("s_lshl_b32 s3, s3, 7")
    e(f"s_lshl_b32 s55, {S_W}, 4")
    e("s_add_u32 s3, s3, s55")
    e(f"s_add_u32 s3, s3, {WS_ML}")
    e("v_mov_b32 v3, 0")
    set_exec("0", "0x80000000")
    g.vm(f"buffer_store_dwordx4 v[36:39], v3, {SRD_WS}, s3 offen {STF}", "mlst")
    exec_all()
    if P["vprio_at"] >= 0: e("s_setprio 1")
    elif P["prio"] or P["qprio"]: e("s_setprio 0")
    stamp()

    WO = 168
    MLR = 232
    e("v_lshrrev_b32 v3, 3, v0")
    e("v_lshlrev_b32 v3, 14, v3")
    e("v_and_b32 v236, 7, v0")
    e("v_lshl_add_u32 v3, v236, 4, v3")
    e(f"s_lshl_b32 s3, {S_X}, 2")
    e(f"s_lshr_b32 s55, {S_I}, 3")
    e("s_add_u32 s3, s3, s55")
    e("s_lshl_b32 s56, s3, 10")
    e("s_lshl_b32 s3, s3, 17")
    e(f"s_lshl_b32 s55, {S_W}, 7")
    e("s_add_u32 s3, s3, s55")
    e("v_add_u32 v3, s3, v3")
    e("v_lshlrev_b32 v237, 4, v0")
    e(f"s_add_u32 s56, s56, {WS_ML}")

    def woload(j):
        r = WO + 4 * j
        off = j * 1024
        g.vm(f"buffer_load_dwordx4 v[{r}:{r+3}], v3, {SRD_WO}, {SOFF[(off//4096)*4096]} offen offset:{off%4096} {WF}", f"wo{j}")

    def issue_ml(track):
        f = g.vm if track else (lambda s, t=None: e(s))
        f(f"buffer_load_dwordx4 v[{MLR}:{MLR+3}], v237, {SRD_WS}, s56 offen {LD}", "poll")

    def pv(j):
        g.waitvm(f"v{j}_1")
        a = 32 + 4 * (j & 1)
        for r in range(4):
            e(f"v_and_b32 v{a+r}, v{4+r}, v{16+j}")
        lo, hi = vreg(2 * j), vreg(2 * j + 1)
        c0 = "0" if j == 0 else "v[8:11]"
        c1 = "0" if j == 0 else "v[12:15]"
        e(f"v_mfma_f32_16x16x32_bf16 v[8:11], v[{a}:{a+3}], v[{lo}:{lo+3}], {c0}")
        e(f"v_mfma_f32_16x16x32_bf16 v[12:15], v[{a}:{a+3}], v[{hi}:{hi+3}], {c1}")

    def ml_finish():
        m, l = MLR, MLR + 2
        e(f"v_mov_b32 v238, v{m}")
        dpp_all("v_max_f32", (238,), ROW16 + XROW)
        e("v_readlane_b32 s55, v238, 63")
        e(f"v_subrev_f32 v238, s55, v{m}")
        e(f"v_mul_f32 v238, {LOG2E:#x}, v238")
        e("v_exp_f32 v238, v238")
        e(f"v_mul_f32 v238, v238, v{l}")
        dpp_all("v_add_f32", (238,), ROW16 + XROW)
        e("v_readlane_b32 s57, v238, 63")
        e("v_mov_b32 v239, s54")
        e("v_subrev_f32 v239, s55, v239")
        e(f"v_mul_f32 v239, {LOG2E:#x}, v239")
        e("v_exp_f32 v239, v239")
        e("v_rcp_f32 v238, s57")
        e("v_mul_f32 v238, v238, v239")

    lagt = P["lagt"]
    nxt_v = nv[0]
    nxt_wo = 0
    done_pv = 0
    ml_issued = False
    while nxt_v < 32:
        vload(nxt_v); nxt_v += 1
        if nxt_v % 2 == 0:
            t = nxt_v // 2 - 1
            if t >= P["wo_start"]:
                for _ in range(P["wo_per"]):
                    if nxt_wo < 16:
                        woload(nxt_wo); nxt_wo += 1
            if t == P["vprio_at"]:
                e("s_setprio 0")
            if t == P["ml_at"]:
                issue_ml(True); ml_issued = True
            while done_pv <= t - lagt:
                pv(done_pv); done_pv += 1
    while nxt_wo < 16:
        woload(nxt_wo); nxt_wo += 1
    assert ml_issued
    while done_pv <= P["ml_at"]:
        pv(done_pv); done_pv += 1
    saved = list(g.vmq)
    poll(issue_ml, [MLR + 1, MLR + 3], 238, 239, first_issued=True)
    ml_finish()
    while done_pv < 16:
        pv(done_pv); done_pv += 1
    stamp()

    if P["prio"]: e("s_setprio 3")
    e("v_bfe_u32 v36, v0, 1, 2")
    e("v_mul_u32_u24 v36, 80, v36")
    e("v_and_b32 v37, 1, v0")
    e("v_lshl_add_u32 v36, v37, 5, v36")
    e("v_and_b32 v37, 16, v0")
    e("v_add_u32 v36, v36, v37")
    for r in range(8):
        e(f"v_mul_f32 v{8+r}, v{8+r}, v238")
    set_exec(VALID_LO, VALID_HI)
    for hf in range(2):
        for r in range(4):
            e(f"ds_add_f32 v36, v{8+4*hf+r} offset:{L_O + 320*hf + 4*r}")
    exec_all()
    e("v_lshrrev_b32 v37, 3, v0")
    e("v_mul_u32_u24 v37, 80, v37")
    e("s_waitcnt lgkmcnt(0)")
    e("s_barrier")
    for k in range(4):
        e(f"ds_read_b128 v[{16+4*k}:{19+4*k}], v37 offset:{L_O + 16*k}")
    e("s_waitcnt lgkmcnt(0)")
    for j in range(16):
        e(f"v_cvt_pk_bf16_f32 v{16+j}, v{16+j}, v{16+j}")
    for j in range(16):
        g.waitvm(f"wo{j}")
        gemv_tile(j, 16 + j, WO + 4 * j, 8, j == 0, j & 1)

    def fold_publish(dreg, soff_reg, tmp):
        for r in range(4):
            e(f"v_mov_b32 v{tmp+r}, v{dreg+r}")
        for r in range(4):
            e(f"v_permlane32_swap_b32 v{dreg+r}, v{tmp+r}")
        for r in range(4):
            e(f"v_add_f32_dpp v{dreg+r}, v{tmp+r}, v{dreg+r} row_ror:8 {FULL}")
        e(f"v_cvt_pk_bf16_f32 v{tmp}, v{dreg}, v{dreg+1}")
        e(f"v_mov_b32 v{tmp+1}, {S_TAG}")
        e(f"v_cvt_pk_bf16_f32 v{tmp+2}, v{dreg+2}, v{dreg+3}")
        e(f"v_mov_b32 v{tmp+3}, {S_TAG}")
        set_exec("0x00ff00ff", "0")
        g.vm(f"buffer_store_dwordx4 v[{tmp}:{tmp+3}], v2, {SRD_WS}, {soff_reg} offen {STF}", "pub")
        exec_all()

    e("s_lshl_b32 s3, s2, 11")
    e(f"s_lshl_b32 s55, {S_W}, 8")
    e("s_add_u32 s3, s3, s55")
    e(f"s_add_u32 s3, s3, {WS_YA}")
    fold_publish(8, "s3", 32)
    stamp()

    TS = stamp_n[0]
    if P["stamps"]:
        for k in range(TS, TS + 4):
            e(f"s_mov_b64 s[{STR[k]}:{STR[k]+1}], 0")
    e("s_cmp_lt_u32 s2, 43")
    e("s_cbranch_scc1 L_ffn")
    e("s_cmp_lt_u32 s2, 128")
    e("s_cbranch_scc1 L_fin")
    e(f"s_cmp_lg_u32 {S_W}, 0")
    e("s_cbranch_scc1 L_fin")
    tail_q = list(g.vmq)

    e(f"s_lshl_b32 s3, {S_X}, 4")
    e(f"s_add_u32 s3, s3, {S_I}")
    e("s_sub_u32 s3, s3, 16")
    e("s_lshl_b32 s55, s3, 4")
    e("s_lshl_b32 s56, s3, 3")
    e("v_lshlrev_b32 v1, 11, v0")
    e("v_add_u32 v1, s55, v1")
    e(f"v_add_u32 v1, {WS_YA}, v1")
    e("v_mov_b32 v2, s55")
    e("v_mov_b32 v3, s56")
    for k in range(1, 4):
        e(f"s_mov_b32 s{52+k if k < 3 else 57}, {k*131072}")
    ya_so = ["0", "s53", "s54", "s57"]
    g.vm(f"buffer_load_dwordx4 v[40:43], v2, {SRD_WS}, 0 offen offset:{0} {LD}", "dummy") if False else None
    e(f"s_mov_b32 s59, {WS_MOD + 2*2048}")

    def issue_side(track):
        f = g.vm if track else (lambda s, t=None: e(s))
        f(f"buffer_load_dwordx4 v[40:43], v2, {SRD_WS}, s59 offen {LD}", "poll")
        f(f"buffer_load_dwordx4 v[44:47], v48, {SRD_WS}, s59 offen {LD}", "poll")

    e(f"v_add_u32 v48, {3*2048}, v2")
    g.vm(f"buffer_load_dwordx2 v[50:51], v3, {SRD_X}, 0 offen", "x4")

    def issue_ya(track):
        f = g.vm if track else (lambda s, t=None: e(s))
        for k in range(4):
            f(f"buffer_load_dwordx4 v[{64+4*k}:{67+4*k}], v1, {SRD_WS}, {ya_so[k]} offen {LD}", "poll")

    poll(issue_side, [41, 43, 45, 47], 52, 53)
    unpack(40, 56, 57); unpack(42, 58, 59)
    unpack(44, 60, 61); unpack(46, 62, 63)
    g.waitvm("x4")
    unpack(50, 52, 53); unpack(51, 54, 55)
    stamp(TS)
    poll(issue_ya, [65, 67, 69, 71, 73, 75, 77, 79], 80, 81)
    stamp(TS + 1)
    for k in range(4):
        b = 64 + 4 * k
        if k == 0:
            unpack(b, 84, 85); unpack(b + 2, 86, 87)
        else:
            unpack(b, 88, 89); unpack(b + 2, 90, 91)
            for r in range(4):
                e(f"v_add_f32 v{84+r}, v{84+r}, v{88+r}")
    dpp_all("v_add_f32", (84, 85, 86, 87), ROW16 + XROW)
    rnd2(84, 85, 88); rnd2(86, 87, 89)
    for r in range(4):
        e(f"v_mul_f32 v{84+r}, v{84+r}, v{56+r}")
    rnd2(84, 85, 88); rnd2(86, 87, 89)
    for r in range(4):
        e(f"v_add_f32 v{84+r}, v{84+r}, v{52+r}")
    e("v_cvt_pk_bf16_f32 v88, v84, v85")
    e(f"v_mov_b32 v89, {S_TAG}")
    e("v_cvt_pk_bf16_f32 v90, v86, v87")
    e(f"v_mov_b32 v91, {S_TAG}")
    e(f"s_mov_b32 s59, {WS_X2}")
    set_exec("0", "0x80000000")
    g.vm(f"buffer_store_dwordx4 v[88:91], v2, {SRD_WS}, s59 offen {STF}", "pub")
    exec_all()
    stamp(TS + 2)
    unpack(88, 84, 85); unpack(90, 86, 87)
    e("v_lshlrev_b32 v1, 11, v0")
    e("v_add_u32 v1, s55, v1")
    e(f"v_add_u32 v1, {WS_YC}, v1")
    e("v_mov_b32 v64, 0")
    e("v_mov_b32 v66, 0")
    e(f"v_mov_b32 v65, {S_TAG}")
    e(f"v_mov_b32 v67, {S_TAG}")

    def issue_yc(track):
        f = g.vm if track else (lambda s, t=None: e(s))
        set_exec("-1", "0x7ff")
        f(f"buffer_load_dwordx4 v[64:67], v1, {SRD_WS}, 0 offen {LD}", "poll")
        exec_all()

    poll(issue_yc, [65, 67], 80, 81)
    stamp(TS + 3)
    unpack(64, 68, 69); unpack(66, 70, 71)
    dpp_all("v_add_f32", (68, 69, 70, 71), ROW16 + XROW)
    rnd2(68, 69, 72); rnd2(70, 71, 73)
    for r in range(4):
        e(f"v_mul_f32 v{68+r}, v{68+r}, v{60+r}")
    rnd2(68, 69, 72); rnd2(70, 71, 73)
    for r in range(4):
        e(f"v_add_f32 v{68+r}, v{68+r}, v{84+r}")
    e("v_cvt_pk_bf16_f32 v72, v68, v69")
    e("v_cvt_pk_bf16_f32 v73, v70, v71")
    set_exec("0", "0x80000000")
    g.vm(f"buffer_store_dwordx2 v[72:73], v3, {SRD_OUT}, 0 offen", "out")
    e("s_cmp_lg_u32 s55, 0")
    e("s_cbranch_scc1 L_noep")
    e(f"v_mov_b32 v74, {S_EP}")
    e(f"buffer_store_dword v74, v2, {SRD_WS}, 0 offen {STF}")
    g.label("L_noep")
    exec_all()
    e("s_branch L_fin")

    g.label("L_ffn")
    g.vmq = list(tail_q)
    e("v_lshrrev_b32 v1, 3, v0")
    e(f"s_lshl_b32 s3, {S_W}, 3")
    e("v_add_u32 v3, s3, v1")
    e(f"v_mul_u32_u24 v3, {8*2752}, v3")
    e("v_and_b32 v40, 3, v0")
    e("v_lshl_add_u32 v3, v40, 4, v3")
    e("s_lshl_b32 s3, s2, 6")
    e("v_add_u32 v3, s3, v3")
    GU = 64
    DN = 96
    for j in range(1, 8):
        e(f"s_mov_b32 s{52+j if j < 6 else 50+j}, {j*2752}") if False else None
    gu_so = ["0"] + [f"s{r}" for r in (53, 54, 55, 56, 57, 59, 52)]
    for j in range(1, 8):
        e(f"s_mov_b32 {gu_so[j]}, {j*2752}")
    set_exec("0x0f0f0f0f", "0x0f0f0f0f")
    for j in range(8):
        g.vm(f"buffer_load_dwordx4 v[{GU+4*j}:{GU+4*j+3}], v3, {SRD_WG}, {gu_so[j]} offen {WF}", f"gu{j}")
    set_exec("0xf0f0f0f0", "0xf0f0f0f0")
    for j in range(8):
        g.vm(f"buffer_load_dwordx4 v[{GU+4*j}:{GU+4*j+3}], v3, {SRD_WU}, {gu_so[j]} offen {WF}", f"gu{j}")
    exec_all()
    e("v_lshlrev_b32 v3, 12, v1")
    e("v_and_b32 v40, 7, v0")
    e("v_lshl_add_u32 v3, v40, 4, v3")
    e("s_lshl_b32 s3, s2, 15")
    e(f"s_lshl_b32 s53, {S_W}, 7")
    e("s_add_u32 s3, s3, s53")
    e("v_add_u32 v3, s3, v3")
    for j in range(4):
        g.vm(f"buffer_load_dwordx4 v[{DN+4*j}:{DN+4*j+3}], v3, {SRD_WD}, 0 offen offset:{1024*j} {WF}", f"dn{j}")
    e("v_lshlrev_b32 v1, 5, v1")
    e(f"s_lshl_b32 s3, {S_W}, 8")
    e("v_add_u32 v1, s3, v1")
    e(f"s_mov_b32 s53, {WS_MOD + 3*2048}")
    e(f"s_mov_b32 s54, {WS_X2}")

    def issue_sb(track):
        f = g.vm if track else (lambda s, t=None: e(s))
        f(f"buffer_load_dwordx4 v[40:43], v1, {SRD_WS}, s53 offen {LD}", "poll")
        f(f"buffer_load_dwordx4 v[44:47], v1, {SRD_WS}, s53 offen offset:16 {LD}", "poll")
        f(f"buffer_load_dwordx4 v[48:51], v1, {SRD_WS}, s53 offen offset:2048 {LD}", "poll")
        f(f"buffer_load_dwordx4 v[52:55], v1, {SRD_WS}, s53 offen offset:2064 {LD}", "poll")

    poll(issue_sb, [41, 43, 45, 47, 49, 51, 53, 55], 56, 57)
    for r in range(4):
        unpack(40 + 2 * r, 112 + 2 * r, 113 + 2 * r)
        unpack(48 + 2 * r, 120 + 2 * r, 121 + 2 * r)
    for k in range(8):
        e(f"v_add_f32 v{120+k}, 1.0, v{120+k}")
    for k in range(0, 8, 2):
        rnd2(120 + k, 121 + k, 56 + k // 2)

    def issue_x2(track):
        f = g.vm if track else (lambda s, t=None: e(s))
        f(f"buffer_load_dwordx4 v[40:43], v1, {SRD_WS}, s54 offen {LD}", "poll")
        f(f"buffer_load_dwordx4 v[44:47], v1, {SRD_WS}, s54 offen offset:16 {LD}", "poll")

    stamp(TS)
    poll(issue_x2, [41, 43, 45, 47], 56, 57)
    stamp(TS + 1)
    for r in range(4):
        unpack(40 + 2 * r, 48 + 2 * r, 49 + 2 * r)
    e("v_add_f32 v56, v48, v49")
    e("v_mul_f32 v57, v48, v48")
    for k in range(1, 8):
        if k >= 2:
            e(f"v_add_f32 v56, v56, v{48+k}")
        e(f"v_fmac_f32 v57, v{48+k}, v{48+k}")
    dpp_all("v_add_f32", (56, 57), [f"row_ror:8 {FULL}"] + XROW)
    e(f"v_mov_b32 v58, {L_STAT}")
    set_exec("0", "0x80000000")
    e("ds_add_f32 v58, v56")
    e("ds_add_f32 v58, v57 offset:4")
    exec_all()
    e("s_waitcnt lgkmcnt(0)")
    e("s_barrier")
    e("ds_read_b64 v[56:57], v58")
    e("s_waitcnt lgkmcnt(0)")
    ln_stats_finish(56, 57, 58)
    ln_apply(48, 56, 57, 58)
    for k in range(8):
        e(f"v_mul_f32 v{48+k}, v{48+k}, v{120+k}")
    for k in range(0, 8, 2):
        rnd2(48 + k, 49 + k, 58 + k // 2)
    for k in range(8):
        e(f"v_add_f32 v{48+k}, v{48+k}, v{112+k}")
    for k in range(8):
        e(f"v_cvt_pk_bf16_f32 v{48+k}, v{48+k}, v{48+k}")
    stamp(TS + 2)
    for j in range(8):
        g.waitvm(f"gu{j}")
        gemv_tile(j, 48 + j, GU + 4 * j, 8, j == 0, j & 1)
    set_exec(VALID_LO, VALID_HI)
    for r in range(4):
        e(f"ds_add_f32 v2, v{8+r} offset:{L_GU + 4*r}")
    exec_all()
    e("v_lshrrev_b32 v1, 3, v0")
    e("v_lshlrev_b32 v1, 4, v1")
    e("s_waitcnt lgkmcnt(0)")
    e("s_barrier")
    e(f"ds_read_b128 v[40:43], v1 offset:{L_GU}")
    e(f"ds_read_b128 v[44:47], v1 offset:{L_GU+128}")
    e("s_waitcnt lgkmcnt(0)")
    rnd2(40, 41, 48); rnd2(42, 43, 49)
    rnd2(44, 45, 50); rnd2(46, 47, 51)
    for r in range(4):
        e(f"v_mul_f32 v{52+r}, {NLOG2E:#x}, v{40+r}")
    for r in range(4):
        e(f"v_exp_f32 v{52+r}, v{52+r}")
    for r in range(4):
        e(f"v_add_f32 v{52+r}, 1.0, v{52+r}")
    for r in range(4):
        e(f"v_rcp_f32 v{52+r}, v{52+r}")
    for r in range(4):
        e(f"v_mul_f32 v{40+r}, v{40+r}, v{52+r}")
    rnd2(40, 41, 48); rnd2(42, 43, 49)
    for r in range(4):
        e(f"v_mul_f32 v{40+r}, v{40+r}, v{44+r}")
    for r in range(4):
        e(f"v_cvt_pk_bf16_f32 v{40+r}, v{40+r}, v{40+r}")
    stamp(TS + 3)
    for j in range(4):
        g.waitvm(f"dn{j}")
        gemv_tile(j, 40 + j, DN + 4 * j, 8, j == 0, j & 1)
    e("s_lshl_b32 s3, s2, 11")
    e(f"s_lshl_b32 s55, {S_W}, 8")
    e("s_add_u32 s3, s3, s55")
    e(f"s_add_u32 s3, s3, {WS_YC}")
    fold_publish(8, "s3", 32)

    g.label("L_fin")
    if P["stamps"]:
        e(f"s_memrealtime s[58:59]")
        e(f"s_add_u32 s3, {S_W}, 1")
        e("s_and_b32 s3, s3, 6")
        e("s_cbranch_scc1 L_end")
        e("s_waitcnt lgkmcnt(0)")
        e("s_lshl_b32 s3, s2, 8")
        e(f"s_lshl_b32 s52, {S_W}, 5")
        e("s_and_b32 s52, s52, 128")
        e("s_add_u32 s3, s3, s52")
        e(f"s_add_u32 s3, s3, {WS_STAMP}")
        e("v_mov_b32 v1, 0")
        e("s_mov_b32 exec_lo, 1")
        e("s_mov_b32 exec_hi, 0")
        for k in range(stamp_n[0]):
            e(f"v_mov_b32 v2, s{STR[k]}")
            e(f"v_mov_b32 v3, s{STR[k]+1}")
            e(f"buffer_store_dwordx2 v[2:3], v1, {SRD_WS}, s3 offen offset:{8*k}")
        e("v_mov_b32 v2, s58")
        e("v_mov_b32 v3, s59")
        e(f"buffer_store_dwordx2 v[2:3], v1, {SRD_WS}, s3 offen offset:{8*stamp_n[0]}")
    g.label("L_end")
    e("s_endpgm")

    body = fix_hazards(g.lines, verbose=True)
    L = [HDR.rstrip(), f"; @launch grid=(256,1,1) block=(512,1,1) lds={LDS_BYTES}",
         '.amdgcn_target "amdgcn-amd-amdhsa--gfx950"', ".text", f".globl {NAME}_kernel", ".p2align 8",
         f".type {NAME}_kernel,@function", f"{NAME}_kernel:"]
    L += body
    L += ['.section .rodata,"a"', ".p2align 6", f".amdhsa_kernel {NAME}_kernel",
          "  .amdhsa_next_free_vgpr 256", "  .amdhsa_next_free_sgpr 102", "  .amdhsa_accum_offset 256",
          "  .amdhsa_group_segment_fixed_size 0", "  .amdhsa_kernarg_size 112", "  .amdhsa_user_sgpr_count 2",
          "  .amdhsa_user_sgpr_kernarg_segment_ptr 1", "  .amdhsa_system_sgpr_workgroup_id_x 1", ".end_amdhsa_kernel"]
    return "\n".join(L) + "\n"


if __name__ == "__main__":
    import argparse
    ap = argparse.ArgumentParser()
    ap.add_argument("-o", default=f"cdna_kernels/{NAME}.s")
    ap.add_argument("opts", nargs="*")
    a = ap.parse_args()
    kw = {}
    for o in a.opts:
        k, v = o.split("=", 1)
        if v in ("True", "False"):
            v = v == "True"
        else:
            try:
                v = int(v, 0)
            except ValueError:
                pass
        kw[k] = v
    open(a.o, "w").write(gen(**kw))
    print("wrote", a.o)
```
